```python
import torch

def _softmax(x, axis=-1):
    return torch.softmax(x, dim=axis)
def _gelu(x):
    return torch.nn.functional.gelu(x, approximate="tanh")
def _silu(x):
    return torch.nn.functional.silu(x)
def _sigmoid(x):
    return torch.sigmoid(x)
def _layernorm(x, axis=-1, eps=1e-5):
    m = x.mean(dim=axis, keepdim=True)
    v = x.var(dim=axis, keepdim=True, unbiased=False)
    return (x - m) / torch.sqrt(v + eps)
def _scatter_add(tgt, idx, src, axis=0):
    return tgt.clone().index_add_(axis, idx, src)
def _segment_sum(src, seg, n):
    out = torch.zeros((n,) + src.shape[1:], dtype=src.dtype)
    return out.index_add_(0, seg, src)
def _pad(x, pw):
    flat = tuple(v for pair in reversed(pw) for v in pair)
    return torch.nn.functional.pad(x, flat)

kernel_name = 'standalone__mha_block_cached__near_ridge'

def setup_inputs():

    _w = (lambda a: (lambda t: t.to(torch.bfloat16) if t.is_floating_point() else t)(torch.as_tensor(a)))
    B, Sq, D = 16, 128, 640
    H, Sk, Dh = 32, 1024, 128
    return {
        "x": _w((lambda *s: torch.randn(*s, dtype=torch.bfloat16) * 0.8)(B, Sq, D)),
        "k_cache": _w((lambda *s: torch.randn(*s, dtype=torch.bfloat16) * 0.8)(B, H, Sk, Dh)),
        "v_cache": _w((lambda *s: torch.randn(*s, dtype=torch.bfloat16) * 0.05)(B, H, Sk, Dh)),
        "wq": _w((lambda *s: torch.randn(*s, dtype=torch.bfloat16) * 0.8)(D, H * Dh) * (D ** -0.5)),
        "wo": _w((lambda *s: torch.randn(*s, dtype=torch.bfloat16) * 0.05)(H * Dh, D) * ((H * Dh) ** -0.5)),
    }

def reference(x, k_cache, v_cache, wq, wo):
    B, Sq, D = x.shape
    H, Dh = 32, 128
    q = (lambda x, *d: x.permute(*d))((x @ wq).reshape(B, Sq, H, Dh), 0, 2, 1, 3)
    scores = torch.einsum("bhqd,bhkd->bhqk", q, k_cache) * (Dh ** -0.5)
    p = _softmax(scores, axis=-1)
    o = torch.einsum("bhqk,bhkd->bhqd", p, v_cache)
    return (lambda x, *d: x.permute(*d))(o, 0, 2, 1, 3).reshape(B, Sq, H * Dh) @ wo
```

```python
class Asm:
    def __init__(self):
        self.lines = []
    def __call__(self, s=""):
        for l in s.split("\n"):
            self.lines.append("    " + l.strip() if l.strip() and not l.strip().endswith(":") else l.strip())
    def label(self, n):
        self.lines.append(n + ":")
    def c(self, s):
        self.lines.append("    ; " + s)
    def text(self):
        import re
        for l in self.lines:
            m = re.search(r"offset:(\d+)", l)
            if m:
                v = int(m.group(1))
                if "buffer_" in l: assert v <= 4095, l
                elif "ds_" in l: assert v <= 65535, l
                elif "global_" in l: assert v <= 4095, l
        return "\n".join(self.lines) + "\n"

HEADER_COMMON = """.amdgcn_target "amdgcn-amd-amdhsa--gfx950"
.text
"""

def kernel_begin(name):
    return f""".globl {name}
.p2align 8
.type {name},@function
{name}:
"""

def kernel_desc(name, vgpr=256, sgpr=102, accum=256):
    return f""".amdhsa_kernel {name}
  .amdhsa_next_free_vgpr {vgpr}
  .amdhsa_next_free_sgpr {sgpr}
  .amdhsa_accum_offset {accum}
  .amdhsa_group_segment_fixed_size 0
  .amdhsa_kernarg_size 64
  .amdhsa_user_sgpr_count 2
  .amdhsa_user_sgpr_kernarg_segment_ptr 1
  .amdhsa_system_sgpr_workgroup_id_x 1
.end_amdhsa_kernel
"""
```

```python
import sys, math
from asmlib import *

OPT = dict(nt=1, stamps=0)
for a_ in sys.argv[2:]:
    k, v = a_.split("="); OPT[k] = int(v)
OUT = sys.argv[1]

SLOT = 16384
C_SCALE = (128 ** -0.5) * math.log2(math.e)
import struct
def f2u(f): return struct.unpack("<I", struct.pack("<f", f))[0]

S_W8, S_G, S_W = 3, 4, 5
SRD_K, SRD_V, SRD_X, SRD_WQ, SRD_WS = 8, 12, 16, 20, 24
S_KVBASE, S_XBASE, S_WQCOL = 28, 29, 30
S_KPOS, S_T, S_C = 31, 32, 33
S_T0, S_T1, S_T2, S_T3 = 34, 35, 36, 37
S_WOFF = 38
S_J = 39
S_BX, S_BW = 40, 41
S_OBASE = 42
S_STAMP = 64
def srd(n): return f"s[{n}:{n+3}]"

V_TID, V_L = 0, 1
V_KD = 2
V_VD = 6
V_WD = 7
V_XD = 8
V_KR = 10
V_VR = 11
V_WR = 15
V_XR = 19
V_M, V_LA, V_LB, V_AL, V_MC = 20, 21, 22, 23, 24
V_T0, V_T1, V_T2, V_T3 = 25, 26, 27, 28
V_OD = 29
V_A = 32
V_Q = 40
V_O = 72
V_S = 136
V_P = 168
V_F = 184
def vr(b, n=1): return f"v{b}" if n == 1 else f"v[{b}:{b+n-1}]"

nt = " nt" if OPT["nt"] else ""

def stamp(a, idx):
    if OPT["stamps"]:
        a(f"s_memrealtime s[{S_STAMP+2*idx}:{S_STAMP+2*idx+1}]")

def setup_common(a):
    a(f"""
    s_cmp_ge_u32 s2, 256
    s_cbranch_scc1 L_end
    s_load_dwordx4 s[48:51], s[0:1], 0
    s_load_dwordx4 s[52:55], s[0:1], 16
    s_load_dwordx2 s[56:57], s[0:1], 56
    """)
    if OPT["stamps"]:
        a(f"s_memrealtime s[{S_STAMP}:{S_STAMP+1}]")
    a(f"""
    v_lshrrev_b32 v2, 6, v0
    v_and_b32 v{V_L}, 63, v0
    v_readfirstlane_b32 s{S_W8}, v2
    s_waitcnt lgkmcnt(0)
    s_lshr_b32 s{S_G}, s{S_W8}, 2
    s_and_b32 s{S_W}, s{S_W8}, 3
    s_mov_b32 s{SRD_X}, s48
    s_mov_b32 s{SRD_X+1}, s49
    s_mov_b32 s{SRD_X+2}, {16*128*640*2}
    s_mov_b32 s{SRD_X+3}, 0x20000
    s_mov_b32 s{SRD_K}, s50
    s_mov_b32 s{SRD_K+1}, s51
    s_mov_b32 s{SRD_K+2}, 0x8000000
    s_mov_b32 s{SRD_K+3}, 0x20000
    s_mov_b32 s{SRD_V}, s52
    s_mov_b32 s{SRD_V+1}, s53
    s_mov_b32 s{SRD_V+2}, 0x8000000
    s_mov_b32 s{SRD_V+3}, 0x20000
    s_mov_b32 s{SRD_WQ}, s54
    s_mov_b32 s{SRD_WQ+1}, s55
    s_mov_b32 s{SRD_WQ+2}, {640*4096*2}
    s_mov_b32 s{SRD_WQ+3}, 0x20000
    s_mov_b32 s{SRD_WS}, s56
    s_mov_b32 s{SRD_WS+1}, s57
    s_mov_b32 s{SRD_WS+2}, 0x20000000
    s_mov_b32 s{SRD_WS+3}, 0x20000
    s_mov_b32 s{S_C}, {hex(f2u(C_SCALE))}
    s_and_b32 s{S_T0}, s2, 7
    s_lshr_b32 s{S_T1}, s2, 3
    s_and_b32 s{S_T2}, s{S_T0}, 1
    s_lshl_b32 s{S_T2}, s{S_T2}, 3
    s_and_b32 s{S_T3}, s{S_T1}, 7
    s_add_u32 s{S_T2}, s{S_T2}, s{S_T3}        ; b
    s_lshr_b32 s{S_T0}, s{S_T0}, 1
    s_lshl_b32 s{S_T0}, s{S_T0}, 2
    s_lshr_b32 s{S_T1}, s{S_T1}, 3
    s_add_u32 s{S_T0}, s{S_T0}, s{S_T1}        ; h (0..15)
    s_lshl_b32 s{S_T3}, s{S_T2}, 5
    s_add_u32 s{S_T3}, s{S_T3}, s{S_T0}        ; b*32+h
    s_lshl_b32 s{S_KVBASE}, s{S_T3}, 18
    s_lshl_b32 s{S_OBASE}, s{S_T3}, 15
    s_mul_i32 s{S_XBASE}, s{S_T2}, {128*1280}
    s_lshl_b32 s{S_WQCOL}, s{S_T0}, 8
    s_lshl_b32 s{S_WOFF}, s{S_W}, 12
    """)
    L = V_L
    a(f"""
    v_and_b32 v32, 15, v{L}
    v_lshrrev_b32 v33, 4, v{L}
    v_and_b32 v34, 31, v{L}
    v_lshrrev_b32 v35, 5, v{L}
    """)
    a(f"""
    v_lshlrev_b32 v36, 8, v33
    v_add_u32 v36, s{S_WOFF}, v36
    """)
    for jj in range(4):
        a(f"""
        v_add_u32 v37, {4*jj}, v33
        v_xor_b32 v37, v32, v37
        v_lshl_add_u32 v{V_KD+jj}, v37, 4, v36
        """)
    a(f"""
    v_lshlrev_b32 v37, 2, v33
    v_xor_b32 v37, v32, v37
    v_lshl_add_u32 v{V_VD}, v37, 4, v36
    """)
    a(f"""
    s_lshl_b32 s{S_T0}, s{S_W}, 4
    v_add_u32 v38, s{S_T0}, v33
    v_lshlrev_b32 v38, 13, v38
    v_lshl_add_u32 v{V_WD}, v37, 4, v38
    """)
    a(f"""
    v_lshrrev_b32 v38, 3, v{L}
    s_lshl_b32 s{S_T0}, s{S_W}, 5
    v_add_u32 v38, s{S_T0}, v38
    v_mul_u32_u24 v38, 1280, v38
    v_and_b32 v39, 7, v{L}
    v_xor_b32 v37, v39, v33
    v_lshl_add_u32 v{V_XD}, v37, 4, v38
    v_xor_b32 v37, 4, v37
    v_lshl_add_u32 v{V_XD+1}, v37, 4, v38
    """)
    a(f"""
    v_xor_b32 v37, v35, v32
    v_lshlrev_b32 v37, 4, v37
    v_lshl_add_u32 v{V_KR}, v34, 8, v37
    """)
    a(f"""
    v_lshrrev_b32 v36, 2, v32          ; r4
    v_and_b32 v37, 3, v32              ; c4
    v_and_b32 v38, 1, v33              ; mblk
    v_lshlrev_b32 v38, 5, v38          ; mblk*32
    v_lshl_add_u32 v39, v37, 3, v38    ; + c4*8
    v_lshl_add_u32 v30, v35, 2, v36    ; 4hh + r4
    v_lshl_add_u32 v39, v30, 8, v39
    ; pi4(c4): 0,2,1,3 = ((c4&1)<<1) | (c4>>1)
    v_and_b32 v31, 1, v37
    v_lshlrev_b32 v31, 1, v31
    v_lshrrev_b32 v37, 1, v37
    v_or_b32 v37, v37, v31
    v_lshl_add_u32 v38, v37, 3, v38
    v_lshl_add_u32 v30, v35, 3, v36    ; 8hh + r4
    v_lshl_add_u32 v38, v30, 8, v38
    """)
    for db in range(4):
        a(f"""
        v_xor_b32 v37, {db}, v36
        v_lshl_add_u32 v{V_VR+db}, v37, 6, v39
        v_lshl_add_u32 v{V_WR+db}, v37, 6, v38
        """)
    a(f"""
    v_lshrrev_b32 v36, 1, v34
    v_and_b32 v36, 7, v36
    v_xor_b32 v36, v35, v36
    v_lshlrev_b32 v36, 4, v36
    v_lshl_add_u32 v36, v34, 7, v36
    v_add_u32 v{V_XR}, s{S_WOFF}, v36
    """)
    a(f"""
    v_lshrrev_b32 v36, 4, v34
    v_lshlrev_b32 v36, 10, v36
    v_lshl_add_u32 v36, v35, 8, v36
    v_lshl_add_u32 v36, v32, 4, v36
    s_lshl_b32 s{S_T0}, s{S_W}, 11
    v_add_u32 v{V_OD}, s{S_T0}, v36
    """)

def issue_kv(a, srdn, s_tile, ldspos_s, vbase4):
    T0, T1 = S_T0, S_T1
    a(f"""
    s_lshr_b32 s{T0}, s{s_tile}, 4
    s_lshl_b32 s{T0}, s{T0}, 22
    s_and_b32 s{T1}, s{s_tile}, 15
    s_lshl_b32 s{T1}, s{T1}, 14
    s_add_u32 s{T0}, s{T0}, s{T1}
    s_add_u32 m0, s{ldspos_s}, s{S_WOFF}
    s_add_u32 s{T0}, s{T0}, s{S_KVBASE}
    """)
    for jj in range(4):
        v = vbase4[jj]
        a(f"buffer_load_dwordx4 v{v}, {srd(srdn)}, s{T0} offen offset:{jj*1024}{nt} lds")

def issue_kv_static(a, isK, tile, slotidx):
    a(f"s_add_u32 m0, s{S_WOFF}, {slotidx*SLOT}")
    a(f"s_add_u32 s{S_T0}, s{S_KVBASE}, {tile*16384}")
    for jj in range(4):
        v = V_KD + jj if isK else V_VD
        a(f"buffer_load_dwordx4 v{v}, {srd(SRD_K if isK else SRD_V)}, s{S_T0} offen offset:{jj*1024}{nt} lds")

def issue_chunk(a, j_s, j_const, bx, bw, colextra):
    T0, T1, T2 = S_T0, S_T1, S_T2
    if j_s is None:
        a(f"s_add_u32 s{T0}, s{S_XBASE}, {j_const*128}")
        a(f"s_add_u32 s{T1}, s{S_WQCOL}, {j_const*64*8192 + colextra}")
    else:
        a(f"""s_lshl_b32 s{T0}, s{j_s}, 7
        s_add_u32 s{T0}, s{T0}, s{S_XBASE}
        s_lshl_b32 s{T1}, s{j_s}, 19
        s_add_u32 s{T1}, s{T1}, s{S_WQCOL}
        s_add_u32 s{T1}, s{T1}, {colextra}""")
    a(f"s_add_u32 m0, s{S_WOFF}, {bx}")
    for jj in range(4):
        if jj: a(f"s_add_u32 s{T0}, s{T0}, {8*1280-1024}")
        else: a("s_nop 0")
        a(f"buffer_load_dwordx4 v{V_XD + (jj&1)}, {srd(SRD_X)}, s{T0} offen offset:{jj*1024} lds")
    a(f"s_add_u32 m0, s{S_WOFF}, {bw}")
    for jj in range(4):
        if jj: a(f"s_add_u32 s{T1}, s{T1}, {4*8192-1024}")
        else: a("s_nop 0")
        a(f"buffer_load_dwordx4 v{V_WD}, {srd(SRD_WQ)}, s{T1} offen offset:{jj*1024} lds")

def compute_chunk(a, bx, bw):
    XF = V_S
    WF = V_F
    A = V_A
    a(f"v_add_u32 v{A}, {bx}, v{V_XR}")
    for db in range(4):
        a(f"v_add_u32 v{A+4+db}, {bw}, v{V_WR+db}")
    for ks in range(1, 4):
        a(f"v_xor_b32 v{A+ks}, {ks*32}, v{A}")
    for ks in range(4):
        a(f"ds_read_b128 {vr(XF+4*ks,4)}, v{A+ks}")
    reads = []
    for ks in range(4):
        for db in range(4):
            for r in range(2):
                reads.append((ks, db, r))
    def rd(i):
        ks, db, r = reads[i]
        f = ks*4+db
        a(f"ds_read_b64_tr_b16 {vr(WF+4*f+2*r,2)}, v{A+4+db} offset:{ks*4096 + r*1024}")
    for i in range(8): rd(i)
    for ks in range(4):
        nxt = [8*(ks+1)+i for i in range(8)] if ks < 3 else []
        for db in range(4):
            if nxt:
                rd(nxt[2*db]); rd(nxt[2*db+1])
            issued = 8*(ks+1) + (2*db+2 if nxt else 0)
            need = 8*ks + 2*db + 2
            a(f"s_waitcnt lgkmcnt({min(15, issued-need)})")
            f = ks*4+db
            a(f"v_mfma_f32_32x32x16_bf16 {vr(V_O+16*db,16)}, {vr(WF+4*f,4)}, {vr(XF+4*ks,4)}, {vr(V_O+16*db,16)}")

def zero_acc(a):
    for i in range(0, 64, 2):
        a(f"v_mov_b64 {vr(V_O+i,2)}, 0")

def q_finalize(a):
    a("s_nop 15")
    for ks8 in range(8):
        db, s = ks8 >> 1, ks8 & 1
        for jj in range(4):
            src = V_O + 16*db + 8*s + 2*jj
            a(f"v_cvt_pk_bf16_f32 v{V_Q+4*ks8+jj}, v{src}, v{src+1}")
    zero_acc(a)
    a(f"v_mov_b32 v{V_M}, 0xff800000")
    a(f"v_mov_b32 v{V_LA}, 0")
    a(f"v_mov_b32 v{V_LB}, 0")

def att_loop(a, tag, t0, t1, final):
    A = V_A
    a(f"s_mov_b32 s{S_T}, {t0}")
    a(f"s_mov_b32 s{S_KPOS}, {(t0 % 3) * 32768}")
    a.label(f"L_att_{tag}")
    a(f"""
    s_add_u32 s{S_T2}, s{S_KPOS}, 65536
    s_cmp_ge_u32 s{S_T2}, 98304
    s_cselect_b32 s{S_T3}, 98304, 0
    s_sub_u32 s{S_T2}, s{S_T2}, s{S_T3}
    s_add_u32 s{S_T2}, s{S_T2}, 16384
    s_add_u32 s{S_J}, s{S_T}, 2
    """)
    if final:
        a(f"s_cmp_ge_u32 s{S_J}, 32")
        a(f"s_cbranch_scc1 L_skipV_{tag}")
    issue_kv(a, SRD_V, S_J, S_T2, [V_VD]*4)
    a.label(f"L_skipV_{tag}")
    a(f"v_add_u32 v{A}, s{S_KPOS}, v{V_KR}")
    for ks in range(1, 8):
        a(f"v_xor_b32 v{A+ks}, {ks*32}, v{A}")
    def krd(i):
        kb, ks = i >> 3, i & 7
        a(f"ds_read_b128 {vr(V_F+4*i,4)}, v{A+ks} offset:{kb*8192}")
    for i in range(8): krd(i)
    for i in range(16):
        if i < 8:
            krd(8+i)
            a("s_waitcnt lgkmcnt(8)")
        else:
            a(f"s_waitcnt lgkmcnt({15-i})")
        kb, ks = i >> 3, i & 7
        c = "0" if ks == 0 else vr(V_S+16*kb,16)
        a(f"v_mfma_f32_32x32x16_bf16 {vr(V_S+16*kb,16)}, {vr(V_F+4*i,4)}, {vr(V_Q+4*ks,4)}, {c}")
    if final:
        a(f"""
        s_cmp_ge_u32 s{S_T}, 30
        s_cbranch_scc1 L_wa1_{tag}
        s_waitcnt vmcnt(16)
        s_branch L_wa2_{tag}
        L_wa1_{tag}:
        s_cmp_eq_u32 s{S_T}, 30
        s_cbranch_scc0 L_wa3_{tag}
        s_waitcnt vmcnt(8)
        s_branch L_wa2_{tag}
        L_wa3_{tag}:
        s_waitcnt vmcnt(0)
        L_wa2_{tag}:
        """)
    else:
        a("s_waitcnt vmcnt(16)")
    a("s_barrier")
    a(f"s_add_u32 s{S_J}, s{S_T}, 3")
    if final:
        a(f"s_cmp_ge_u32 s{S_J}, 32")
        a(f"s_cbranch_scc1 L_skipK_{tag}")
    issue_kv(a, SRD_K, S_J, S_KPOS, [V_KD+j for j in range(4)])
    a.label(f"L_skipK_{tag}")
    a(f"s_add_u32 s{S_T2}, s{S_KPOS}, 16384")
    for db in range(4):
        a(f"v_add_u32 v{A+db}, s{S_T2}, v{V_VR+db}")
    def vrd(ks4, db, r):
        f = ks4*4+db
        a(f"ds_read_b64_tr_b16 {vr(V_F+4*f+2*r,2)}, v{A+db} offset:{ks4*4096 + r*2048}")
    for db in range(4):
        for r in range(2): vrd(0, db, r)
    S = V_S
    T0, T1, T2, T3 = V_T0, V_T1, V_T2, V_T3
    a(f"v_max3_f32 v{T0}, v{S+0}, v{S+1}, v{S+2}")
    a(f"v_max3_f32 v{T1}, v{S+3}, v{S+4}, v{S+5}")
    a(f"v_max3_f32 v{T2}, v{S+6}, v{S+7}, v{S+8}")
    a(f"v_max3_f32 v{T3}, v{S+9}, v{S+10}, v{S+11}")
    a(f"v_max3_f32 v{T0}, v{T0}, v{S+12}, v{S+13}")
    a(f"v_max3_f32 v{T1}, v{T1}, v{S+14}, v{S+15}")
    a(f"v_max3_f32 v{T2}, v{T2}, v{S+16}, v{S+17}")
    a(f"v_max3_f32 v{T3}, v{T3}, v{S+18}, v{S+19}")
    a(f"v_max3_f32 v{T0}, v{T0}, v{S+20}, v{S+21}")
    a(f"v_max3_f32 v{T1}, v{T1}, v{S+22}, v{S+23}")
    a(f"v_max3_f32 v{T2}, v{T2}, v{S+24}, v{S+25}")
    a(f"v_max3_f32 v{T3}, v{T3}, v{S+26}, v{S+27}")
    a(f"v_max3_f32 v{T0}, v{T0}, v{S+28}, v{S+29}")
    a(f"v_max3_f32 v{T1}, v{T1}, v{S+30}, v{S+31}")
    a(f"v_max3_f32 v{T0}, v{T0}, v{T2}, v{T3}")
    a(f"v_max3_f32 v{T0}, v{T0}, v{T1}, v{V_M}")
    a(f"v_mov_b32 v{T1}, v{T0}")
    a("s_nop 1")
    a(f"v_permlane32_swap_b32 v{T0}, v{T1}")
    a(f"v_max_f32 v{T0}, v{T0}, v{T1}")
    a(f"v_sub_f32 v{V_AL}, v{V_M}, v{T0}")
    a(f"v_mul_f32 v{V_AL}, s{S_C}, v{V_AL}")
    a(f"v_exp_f32 v{V_AL}, v{V_AL}")
    a(f"v_mov_b32 v{V_M}, v{T0}")
    a(f"v_mul_f32 v{V_MC}, s{S_C}, v{T0}")
    for db in range(4):
        for r in range(2): vrd(1, db, r) if not (db == 3 and r == 1) else None
    a(f"v_mul_f32 v{V_LA}, v{V_LA}, v{V_AL}")
    a(f"v_mul_f32 v{V_LB}, v{V_LB}, v{V_AL}")
    for i in range(64):
        a(f"v_mul_f32 v{V_O+i}, v{V_O+i}, v{V_AL}")
    vrd(1, 3, 1)
    def softmax_block(lo, hi):
        for i in range(lo, hi):
            a(f"v_fma_f32 v{S+i}, v{S+i}, s{S_C}, -v{V_MC}")
        for i in range(lo, hi):
            a(f"v_exp_f32 v{S+i}, v{S+i}")
        for i in range(lo, hi, 2):
            a(f"v_add_f32 v{V_LA}, v{V_LA}, v{S+i}")
            a(f"v_add_f32 v{V_LB}, v{V_LB}, v{S+i+1}")
            a(f"v_cvt_pk_bf16_f32 v{V_P+i//2}, v{S+i}, v{S+i+1}")
    def pv(ks4, waits):
        for db in range(4):
            f = ks4*4+db
            if waits[db] is not None: a(f"s_waitcnt lgkmcnt({waits[db]})")
            a(f"v_mfma_f32_32x32x16_bf16 {vr(V_O+16*db,16)}, {vr(V_F+4*f,4)}, {vr(V_P+4*ks4,4)}, {vr(V_O+16*db,16)}")
    softmax_block(0, 8)
    softmax_block(8, 16)
    a("s_waitcnt lgkmcnt(0)")
    for db in range(4):
        for r in range(2): vrd(2, db, r)
    pv(0, [None]*4)
    softmax_block(16, 24)
    for db in range(4):
        for r in range(2): vrd(3, db, r) if db < 3 else None
    pv(1, [None]*4)
    vrd(3, 3, 0); vrd(3, 3, 1)
    softmax_block(24, 32)
    a("s_waitcnt lgkmcnt(8)")
    pv(2, [None]*4)
    pv(3, [6, 4, 2, 0])
    if final:
        a(f"""
        s_cmp_ge_u32 s{S_T}, 29
        s_cbranch_scc1 L_wb1_{tag}
        s_waitcnt vmcnt(16)
        s_branch L_wb2_{tag}
        L_wb1_{tag}:
        s_cmp_eq_u32 s{S_T}, 29
        s_cbranch_scc0 L_wb3_{tag}
        s_waitcnt vmcnt(12)
        s_branch L_wb2_{tag}
        L_wb3_{tag}:
        s_cmp_eq_u32 s{S_T}, 30
        s_cbranch_scc0 L_wb2_{tag}
        s_waitcnt vmcnt(4)
        L_wb2_{tag}:
        """)
    else:
        a("s_waitcnt vmcnt(16)")
    a("s_barrier")
    a(f"""
    s_add_u32 s{S_KPOS}, s{S_KPOS}, 32768
    s_cmp_ge_u32 s{S_KPOS}, 98304
    s_cselect_b32 s{S_KPOS}, 0, s{S_KPOS}
    s_add_u32 s{S_T}, s{S_T}, 1
    s_cmp_lt_u32 s{S_T}, {t1}
    s_cbranch_scc1 L_att_{tag}
    """)

def att_epilogue(a, headextra):
    T0, T1 = V_T0, V_T1
    a(f"v_add_f32 v{T0}, v{V_LA}, v{V_LB}")
    a(f"v_mov_b32 v{T1}, v{T0}")
    a("s_nop 1")
    a(f"v_permlane32_swap_b32 v{T0}, v{T1}")
    a(f"v_add_f32 v{T0}, v{T0}, v{T1}")
    a(f"v_rcp_f32 v{T0}, v{T0}")
    a("s_nop 7")
    for i in range(64):
        a(f"v_mul_f32 v{V_O+i}, v{V_O+i}, v{T0}")
    for db in range(4):
        a(f"s_add_u32 s{S_T0}, s{S_OBASE}, {headextra + db*8192}")
        for p in range(2):
            dst = V_F + 8*db + 4*p
            o = V_O + 16*db + 4*p
            a(f"v_cvt_pk_bf16_f32 v{dst}, v{o}, v{o+1}")
            a(f"v_cvt_pk_bf16_f32 v{dst+1}, v{o+2}, v{o+3}")
            a(f"v_cvt_pk_bf16_f32 v{dst+2}, v{o+8}, v{o+9}")
            a(f"v_cvt_pk_bf16_f32 v{dst+3}, v{o+10}, v{o+11}")
            a(f"buffer_store_dwordx4 {vr(dst,4)}, v{V_OD}, {srd(SRD_WS)}, s{S_T0} offen offset:{p*512}")

def store_stamps(a, n, slot):
    a(f"""
    s_waitcnt lgkmcnt(0)
    v_cmp_eq_u32 vcc, 0, v{V_L}
    s_and_saveexec_b64 s[60:61], vcc
    s_mul_i32 s{S_T0}, s2, {16*8}
    s_add_u32 s{S_T0}, s{S_T0}, {0x2000000 + slot*8}
    v_mov_b32 v34, 0
    """)
    for i in range(n):
        a(f"v_mov_b32 v32, s{S_STAMP+2*i}")
        a(f"v_mov_b32 v33, s{S_STAMP+2*i+1}")
        a(f"buffer_store_dwordx2 v[32:33], v34, {srd(SRD_WS)}, s{S_T0} offen offset:{8*i}")
        a("s_nop 1")
    a("s_mov_b64 exec, s[60:61]")

def gen_k1():
    a = Asm()
    setup_common(a)
    a(f"s_cmp_eq_u32 s{S_G}, 0")
    a("s_cbranch_scc0 L_g1")
    a("s_setprio 1")
    def pair(j): return 4 + 2*((j+2) % 3)
    for j in range(3):
        issue_chunk(a, None, j, pair(j)*SLOT, (pair(j)+1)*SLOT, 0)
    zero_acc(a)
    for j in range(10):
        a(f"s_waitcnt vmcnt({16 if j == 0 else (8 if j < 9 else 0)})")
        a("s_barrier")
        if j >= 1 and j + 2 <= 9:
            issue_chunk(a, None, j+2, pair(j+2)*SLOT, (pair(j+2)+1)*SLOT, 0)
        compute_chunk(a, pair(j)*SLOT, (pair(j)+1)*SLOT)
    q_finalize(a)
    stamp(a, 1)
    a("s_barrier")
    att_loop(a, "g0", 0, 16, False)
    stamp(a, 2)
    a("s_setprio 0")
    att_epilogue(a, 0)
    for n in range(32, 64):
        if n == 32: a("s_waitcnt vmcnt(20)")
        elif n == 33: a("s_waitcnt vmcnt(16)")
        elif n == 34: a("s_waitcnt vmcnt(12)")
        elif n == 35: a("s_waitcnt vmcnt(8)")
        a("s_barrier")
    stamp(a, 3)
    if OPT["stamps"]:
        a(f"s_cmp_eq_u32 s{S_W}, 0")
        a("s_cbranch_scc0 L_end")
        store_stamps(a, 4, 0)
    a("s_branch L_end")
    a.label("L_g1")
    issue_kv_static(a, True, 0, 0)
    issue_kv_static(a, False, 0, 1)
    issue_kv_static(a, True, 1, 2)
    issue_kv_static(a, False, 1, 3)
    zero_acc(a)
    for j in range(10):
        if j == 9:
            issue_kv_static(a, True, 2, 4)
        a("s_barrier")
    a("s_waitcnt vmcnt(16)")
    a("s_barrier")
    for n in range(4):
        a(f"s_waitcnt vmcnt({12-4*n})")
        a("s_barrier")
    issue_chunk(a, None, 0, 6*SLOT, 7*SLOT, 4096)
    a("s_barrier")
    a("s_barrier")
    a(f"s_mov_b32 s{S_J}, 0")
    a(f"s_mov_b32 s{S_BX}, {6*SLOT}")
    a.label("L_h1")
    a(f"s_xor_b32 s{S_BW}, s{S_BX}, {(6*SLOT) ^ (8*SLOT)}")
    a(f"s_cmp_ge_u32 s{S_J}, 9")
    a("s_cbranch_scc1 L_h1_last")
    a(f"s_add_u32 s60, s{S_J}, 1")
    a(f"s_add_u32 s61, s{S_BW}, {SLOT}")
    issue_chunk(a, 60, None, f"s{S_BW}", "s61", 4096)
    a("s_waitcnt vmcnt(8)")
    a("s_branch L_h1_w")
    a.label("L_h1_last")
    a("s_waitcnt vmcnt(0)")
    a.label("L_h1_w")
    a("s_barrier")
    a(f"s_add_u32 s61, s{S_BX}, {SLOT}")
    compute_chunk(a, f"s{S_BX}", "s61")
    a("s_barrier")
    a(f"s_mov_b32 s{S_BX}, s{S_BW}")
    a(f"s_add_u32 s{S_J}, s{S_J}, 1")
    a(f"s_cmp_lt_u32 s{S_J}, 10")
    a("s_cbranch_scc1 L_h1")
    q_finalize(a)
    for n in range(26, 32):
        a("s_barrier")
    stamp(a, 0)
    a("s_setprio 1")
    att_loop(a, "g1", 16, 32, True)
    stamp(a, 1)
    att_epilogue(a, 16*32768)
    if OPT["stamps"]:
        a("s_waitcnt vmcnt(0)")
        stamp(a, 2)
        a(f"s_cmp_eq_u32 s{S_W}, 0")
        a("s_cbranch_scc0 L_end")
        store_stamps(a, 3, 4)
    a.label("L_end")
    a("s_endpgm")
    return a.text()

def gen_k2():
    a = Asm()
    SRD_O, SRD_WO, SRD_OUT = 8, 12, 16
    S_W8 = 3; S_OB, S_WB, S_LB = 20, 21, 22
    T0, T1, T2, T3 = 24, 25, 26, 27
    V_L = 1; V_WD = 2
    V_OD = 7; V_RD = 8; V_T = 10
    V_ACC = 16
    V_B = 96
    V_AF = 160
    a(f"""
    s_cmp_ge_u32 s2, 256
    s_cbranch_scc1 L2_end
    s_load_dwordx4 s[48:51], s[0:1], 32
    s_load_dwordx2 s[56:57], s[0:1], 56
    v_lshrrev_b32 v2, 6, v0
    v_and_b32 v{V_L}, 63, v0
    v_readfirstlane_b32 s{S_W8}, v2
    s_waitcnt lgkmcnt(0)
    s_mov_b32 s{SRD_WO}, s48
    s_mov_b32 s{SRD_WO+1}, s49
    s_mov_b32 s{SRD_WO+2}, {4096*640*2}
    s_mov_b32 s{SRD_WO+3}, 0x20000
    s_mov_b32 s{SRD_OUT}, s50
    s_mov_b32 s{SRD_OUT+1}, s51
    s_mov_b32 s{SRD_OUT+2}, {16*128*640*2}
    s_mov_b32 s{SRD_OUT+3}, 0x20000
    s_mov_b32 s{SRD_O}, s56
    s_mov_b32 s{SRD_O+1}, s57
    s_mov_b32 s{SRD_O+2}, 0x20000000
    s_mov_b32 s{SRD_O+3}, 0x20000
    s_and_b32 s{T0}, s2, 7
    s_lshr_b32 s{T1}, s2, 3
    s_lshr_b32 s{T2}, s{T0}, 1
    s_lshl_b32 s{T2}, s{T2}, 3
    s_and_b32 s{T3}, s{T1}, 7
    s_add_u32 s28, s{T2}, s{T3}            ; rowblk
    s_and_b32 s{T0}, s{T0}, 1
    s_lshl_b32 s{T0}, s{T0}, 2
    s_lshr_b32 s{T1}, s{T1}, 3
    s_add_u32 s29, s{T0}, s{T1}            ; colblk
    s_lshr_b32 s{T0}, s28, 1               ; b
    s_lshl_b32 s{T0}, s{T0}, 5
    s_lshl_b32 s{T1}, s{S_W8}, 2
    s_add_u32 s{T0}, s{T0}, s{T1}
    s_lshl_b32 s{T0}, s{T0}, 15
    s_and_b32 s{T1}, s28, 1
    s_lshl_b32 s{T1}, s{T1}, 12
    s_add_u32 s{S_OB}, s{T0}, s{T1}
    s_mul_i32 s{T0}, s{S_W8}, {4*128*1280}
    s_mul_i32 s{T1}, s29, 160
    s_add_u32 s{S_WB}, s{T0}, s{T1}
    s_mul_i32 s{S_LB}, s{S_W8}, 20480
    """)
    for jj in range(5):
        a(f"""
        v_add_u32 v{V_T}, {jj*64}, v{V_L}
        v_mul_u32_u24 v{V_T+1}, 6554, v{V_T}
        v_lshrrev_b32 v{V_T+1}, 16, v{V_T+1}
        v_mul_u32_u24 v{V_T+2}, 10, v{V_T+1}
        v_sub_u32 v{V_T+2}, v{V_T}, v{V_T+2}
        v_mul_u32_u24 v{V_T+1}, 1280, v{V_T+1}
        v_lshl_add_u32 v{V_T+1}, v{V_T+2}, 4, v{V_T+1}
        v_subrev_u32 v{V_WD+jj}, {jj*1024 if jj < 4 else 0}, v{V_T+1}
        """)
    a(f"v_lshlrev_b32 v{V_OD}, 4, v{V_L}")
    a(f"""
    v_lshrrev_b32 v{V_T}, 4, v{V_L}
    v_bfe_u32 v{V_T+1}, v{V_L}, 2, 2
    v_lshl_add_u32 v{V_T}, v{V_T}, 2, v{V_T+1}
    v_mul_u32_u24 v{V_T}, 160, v{V_T}
    v_and_b32 v{V_T+1}, 3, v{V_L}
    v_lshl_add_u32 v{V_T}, v{V_T+1}, 3, v{V_T}
    v_add_u32 v{V_RD}, s{S_LB}, v{V_T}
    """)
    for i in range(0, 80, 2):
        a(f"v_mov_b64 v[{V_ACC+i}:{V_ACC+i+1}], 0")
    NCH = 16
    def issue(c):
        slot = c & 3
        a(f"s_add_u32 m0, s{S_LB}, {slot*5120}")
        a(f"s_add_u32 s{T0}, s{S_WB}, {c*32*1280}")
        for jj in range(4):
            a(f"buffer_load_dwordx4 v{V_WD+jj}, s[{SRD_WO}:{SRD_WO+3}], s{T0} offen offset:{jj*1024} lds")
        a(f"s_add_u32 m0, s{S_LB}, {slot*5120+4096}")
        a(f"s_add_u32 s{T1}, s{S_OB}, {c*8192}")
        a(f"buffer_load_dwordx4 v{V_WD+4}, s[{SRD_WO}:{SRD_WO+3}], s{T0} offen lds")
        for rb in range(4):
            a(f"buffer_load_dwordx4 v[{V_B+16*slot+4*rb}:{V_B+16*slot+4*rb+3}], v{V_OD}, s[{SRD_O}:{SRD_O+3}], s{T1} offen offset:{rb*1024}")
    for c in range(3): issue(c)
    for c in range(NCH):
        slot = c & 3
        if c + 3 < NCH: issue(c+3)
        younger = min(NCH-1, c+3) - c
        a(f"s_waitcnt vmcnt({9*younger})")
        AF = V_AF + 20*(c & 1)
        for nb in range(5):
            for r in range(2):
                a(f"ds_read_b64_tr_b16 v[{AF+4*nb+2*r}:{AF+4*nb+2*r+1}], v{V_RD} offset:{slot*5120 + r*2560 + nb*32}")
        for nb in range(5):
            a(f"s_waitcnt lgkmcnt({8-2*nb})")
            for rb in range(4):
                d = V_ACC + 4*(rb*5+nb)
                a(f"v_mfma_f32_16x16x32_bf16 v[{d}:{d+3}], v[{AF+4*nb}:{AF+4*nb+3}], v[{V_B+16*slot+4*rb}:{V_B+16*slot+4*rb+3}], v[{d}:{d+3}]")
    a("s_nop 7")
    a(f"v_lshlrev_b32 v{V_T}, 4, v{V_L}")
    a(f"v_add_u32 v{V_T+1}, s{S_LB}, v{V_T}")
    for t in range(20):
        a(f"ds_write_b128 v{V_T+1}, v[{V_ACC+4*t}:{V_ACC+4*t+3}] offset:{t*1024}")
    a("s_waitcnt lgkmcnt(0)")
    a("s_barrier")
    a(f"""
    s_and_b32 s{T0}, s{S_W8}, 3
    s_mul_i32 s{T1}, s{T0}, 5120
    s_lshr_b32 s{T2}, s{S_W8}, 2
    s_mul_i32 s{T2}, s{T2}, 3072
    s_add_u32 s{T1}, s{T1}, s{T2}
    v_add_u32 v{V_T+1}, s{T1}, v{V_T}
    v_add_u32 v{V_T+2}, 61440, v{V_T+1}
    v_add_u32 v{V_T+3}, 122880, v{V_T+1}
    """)
    a(f"""
    v_and_b32 v{V_T+4}, 15, v{V_L}
    s_lshl_b32 s{T2}, s28, 6
    s_lshl_b32 s{T3}, s{T0}, 4
    s_add_u32 s{T2}, s{T2}, s{T3}
    v_add_u32 v{V_T+4}, s{T2}, v{V_T+4}
    v_mul_u32_u24 v{V_T+4}, 1280, v{V_T+4}
    v_lshrrev_b32 v{V_T+5}, 4, v{V_L}
    v_lshl_add_u32 v{V_T+4}, v{V_T+5}, 3, v{V_T+4}
    s_mul_i32 s{T2}, s29, 160
    s_lshr_b32 s{T3}, s{S_W8}, 2
    s_mul_i32 s{T3}, s{T3}, 96
    s_add_u32 s{T2}, s{T2}, s{T3}
    """)
    def red_tile(k):
        R = 32
        for w in range(8):
            base = V_T+1 + (w // 3)
            a(f"ds_read_b128 v[{R+4*w}:{R+4*w+3}], v{base} offset:{(w % 3)*20480 + k*1024}")
        a("s_waitcnt lgkmcnt(0)")
        for w in range(1, 8):
            for i in range(4):
                a(f"v_add_f32 v{R+i}, v{R+i}, v{R+4*w+i}")
        a(f"v_cvt_pk_bf16_f32 v{R+4}, v{R}, v{R+1}")
        a(f"v_cvt_pk_bf16_f32 v{R+5}, v{R+2}, v{R+3}")
        a(f"buffer_store_dwordx2 v[{R+4}:{R+5}], v{V_T+4}, s[{SRD_OUT}:{SRD_OUT+3}], s{T2} offen offset:{k*32}")
        a("s_nop 1")
    red_tile(0); red_tile(1)
    a(f"s_cmp_ge_u32 s{S_W8}, 4")
    a("s_cbranch_scc1 L2_end")
    red_tile(2)
    a.label("L2_end")
    a("s_endpgm")
    return a.text()

K1 = "standalone__mha_block_cached__near_ridge_kernel"
K2 = "mha_oproj_kernel"
hdr = f"""; generated by gen1.py
; @launch kernel={K1} grid=(256,1,1) block=(512,1,1) lds=163840
; @launch kernel={K2} grid=(256,1,1) block=(512,1,1) lds=163840
"""
txt = hdr + HEADER_COMMON + kernel_begin(K1) + gen_k1() + kernel_begin(K2) + gen_k2() + '.section .rodata,"a"\n.p2align 6\n' + kernel_desc(K1, 256, 102, 256) + ".p2align 6\n" + kernel_desc(K2, 256, 102, 256)
open(OUT, "w").write(txt)
```

```python
class F:
    def __init__(self, ins, after=-1, before=99, cost=None, lds=None, grp=None):
        self.ins = ins; self.after = after; self.before = before
        self.cost = cost if cost is not None else (8 if ins.startswith("v_exp") or ins.startswith("v_rcp") else 4)
        self.lds = lds
        self.grp = grp
def schedule(nm, streams, cap=24, head_must=None):
    pos = [0]*len(streams)
    out = {g: [] for g in range(-1, nm)}
    for g in range(-1, nm):
        budget = cap if g >= 0 else 0
        ldsb = 3.5
        while True:
            cands = []
            for si, st in enumerate(streams):
                if pos[si] < len(st):
                    f = st[pos[si]]
                    u = 0
                    if f.ins.startswith("ds_read_b128"): u = 1.5
                    elif f.ins.startswith("ds_read_b64"): u = 1.0
                    if u > ldsb and f.before > g: continue
                    if f.after <= g:
                        cands.append((f.before, si))
            if not cands: break
            cands.sort()
            pick = None
            for dl_, si_ in cands:
                f_ = streams[si_][pos[si_]]
                if dl_ <= g or budget >= f_.cost:
                    pick = (dl_, si_); break
            if pick is None: break
            dl, si = pick
            f = streams[si][pos[si]]
            if True:
                out[g].append(f); pos[si] += 1; budget -= f.cost
                if f.ins.startswith("ds_read_b128"): ldsb -= 1.5
                elif f.ins.startswith("ds_read_b64"): ldsb -= 1.0
            else:
                break
    for si, st in enumerate(streams):
        assert pos[si] == len(st), (si, pos[si], len(st), st[pos[si]].ins)
    return out
class LdsTracker:
    def __init__(self, pending=()):
        self.ops = list(pending)
        self.done = 0
    def issue(self, tag): self.ops.append(tag)
    def need(self, tags):
        idx = -1
        for i, t in enumerate(self.ops):
            if t in tags: idx = max(idx, i)
        if idx < self.done: return None
        n = len(self.ops) - 1 - idx
        self.done = idx + 1
        return f"s_waitcnt lgkmcnt({min(n, 15)})"
```

```python
import sys, math, struct
from asmlib import *

OPT = dict(nt=1, stamps=0, thr=8, prof=0, F0=14, taper=13, touch=0, pt=24, pr1=0, pace=0, g1off=0, dump=0, xV=0, xK=0, xE=0, xB=0, xM=0, xW=0, cap=26, np=7, first=1, t0=-3, nokv=0, nocomp=0, pd=6, op1=1, wt=1, ot=1, tp=0, pt0=19, ott=29)
for a_ in sys.argv[2:]:
    k, v = a_.split("="); OPT[k] = int(v)
OUT = sys.argv[1]

SLOT = 16384
C_SCALE = (128 ** -0.5) * math.log2(math.e)
def f2u(f): return struct.unpack("<I", struct.pack("<f", f))[0]

S_W8, S_G, S_W = 3, 4, 5
SRD_K, SRD_V, SRD_X, SRD_WQ, SRD_WS = 8, 12, 16, 20, 24
S_KVBASE, S_XBASE, S_WQCOL = 28, 29, 30
S_KPOS, S_T, S_C = 31, 32, 33
S_T0, S_T1, S_T2, S_T3 = 34, 35, 36, 37
S_WOFF = 38
S_J = 39
S_OBASE = 42
S_THR, S_THR0 = 43, 46
S_VPOS, S_KN = 44, 45
S_STAMP = 64
SRD_WO, SRD_OUT, SRD_DBG = 76, 80, 84
S_OQ, S_WQO, S_ROWBLK, S_COLBLK, S_FLAG, S_SL0, S_SL1, S_SL2, S_SPIN, S_HB = 88, 89, 90, 91, 92, 93, 94, 95, 96, 97
def srd(n): return f"s[{n}:{n+3}]"

V_L = 1
V_KD = 2
V_VD = 6
V_WD = 7
V_XD = 8
V_KR = 10
V_VR = 11
V_WR = 15
V_XR = 19
V_LA, V_LB = 20, 21
V_T0, V_T1, V_T2, V_T3 = 22, 23, 24, 25
V_OD = 26
V_QS = 27
V_AV = 28
V_AK = 32
V_Q = 40
V_O = 72
V_S = 136
V_P = 168
V_F = 184
V_NM = 240
V_LIN = 2
V_KW = 4
V_VW = 8
V_WA = 12
V_FIFO = 32
G1_KD, G1_VD, G1_XD, G1_WD = 16, 20, 21, 23
def vr(b, n=1): return f"v{b}" if n == 1 else f"v[{b}:{b+n-1}]"
nt = " nt" if OPT["nt"] else ""

def stamp(a, idx):
    if OPT["stamps"]:
        a(f"s_memrealtime s[{S_STAMP+2*idx}:{S_STAMP+2*idx+1}]")
        if OPT["prof"] == 6 and idx < 4:
            a(f"s_memtime s[{84+2*idx}:{85+2*idx}]")
PROF = [0]
def prof(a, on):
    if OPT["prof"] == 1 and on:
        i = PROF[0]; PROF[0] += 1
        a(f"s_cmp_eq_u32 s{S_T}, {OPT.get('pt', 24)}")
        a(f"s_cbranch_scc0 L_prof{i}")
        a(f"s_memtime s[{84+2*i}:{85+2*i}]")
        a(f"L_prof{i}:")

def setup_scalar(a):
    a(f"""
    s_cmp_ge_u32 s2, 256
    s_cbranch_scc1 L_end
    s_load_dwordx4 s[48:51], s[0:1], 0
    s_load_dwordx4 s[52:55], s[0:1], 16
    s_load_dwordx2 s[56:57], s[0:1], 56
    s_load_dwordx4 s[60:63], s[0:1], 32
    s_load_dwordx2 s[98:99], s[0:1], 48
    """)
    stamp(a, 0)
    a(f"""
    v_lshrrev_b32 v2, 6, v0
    v_and_b32 v{V_L}, 63, v0
    v_readfirstlane_b32 s{S_W8}, v2
    s_and_b32 s{S_T0}, s2, 7
    s_lshr_b32 s{S_T1}, s2, 3
    s_and_b32 s{S_T2}, s{S_T0}, 1
    s_lshl_b32 s{S_T2}, s{S_T2}, 3
    s_and_b32 s{S_T3}, s{S_T1}, 7
    s_add_u32 s{S_T2}, s{S_T2}, s{S_T3}        ; b
    s_lshr_b32 s{S_T0}, s{S_T0}, 1
    s_lshl_b32 s{S_T0}, s{S_T0}, 2
    s_lshr_b32 s{S_T1}, s{S_T1}, 3
    s_add_u32 s{S_T0}, s{S_T0}, s{S_T1}        ; h (0..15)
    s_lshl_b32 s{S_T3}, s{S_T2}, 5
    s_add_u32 s{S_T3}, s{S_T3}, s{S_T0}        ; b*32+h
    s_lshl_b32 s{S_KVBASE}, s{S_T3}, 18
    s_lshl_b32 s{S_OBASE}, s{S_T3}, 15
    s_mul_i32 s{S_XBASE}, s{S_T2}, {128*1280}
    s_lshl_b32 s{S_WQCOL}, s{S_T0}, 8
    s_lshr_b32 s{S_G}, s{S_W8}, 2
    s_and_b32 s{S_W}, s{S_W8}, 3
    s_lshl_b32 s{S_WOFF}, s{S_W}, 12
    s_waitcnt lgkmcnt(0)
    s_mov_b32 s{SRD_X}, s48
    s_mov_b32 s{SRD_X+1}, s49
    s_mov_b32 s{SRD_X+2}, {16*128*640*2}
    s_mov_b32 s{SRD_X+3}, 0x20000
    s_mov_b32 s{SRD_K}, s50
    s_mov_b32 s{SRD_K+1}, s51
    s_mov_b32 s{SRD_K+2}, 0x8000000
    s_mov_b32 s{SRD_K+3}, 0x20000
    s_mov_b32 s{SRD_V}, s52
    s_mov_b32 s{SRD_V+1}, s53
    s_mov_b32 s{SRD_V+2}, 0x8000000
    s_mov_b32 s{SRD_V+3}, 0x20000
    s_mov_b32 s{SRD_WQ}, s54
    s_mov_b32 s{SRD_WQ+1}, s55
    s_mov_b32 s{SRD_WQ+2}, {640*4096*2}
    s_mov_b32 s{SRD_WQ+3}, 0x20000
    s_mov_b32 s{SRD_WS}, s56
    s_mov_b32 s{SRD_WS+1}, s57
    s_mov_b32 s{SRD_WS+2}, 0x20000000
    s_mov_b32 s{SRD_WS+3}, 0x20000
    s_mov_b32 s{S_C}, {hex(f2u(C_SCALE))}
    s_mov_b32 s{SRD_WO}, s60
    s_mov_b32 s{SRD_WO+1}, s61
    s_mov_b32 s{SRD_WO+2}, {4096*640*2}
    s_mov_b32 s{SRD_WO+3}, 0x20000
    s_mov_b32 s{SRD_OUT}, s62
    s_mov_b32 s{SRD_OUT+1}, s63
    s_mov_b32 s{SRD_OUT+2}, {16*128*640*2}
    s_mov_b32 s{SRD_OUT+3}, 0x20000
    s_mov_b32 s{SRD_DBG}, s98
    s_mov_b32 s{SRD_DBG+1}, s99
    s_mov_b32 s{SRD_DBG+2}, 256
    s_mov_b32 s{SRD_DBG+3}, 0x20000
    s_and_b32 s{S_T0}, s2, 7
    s_lshr_b32 s{S_T1}, s2, 3
    s_lshr_b32 s{S_T2}, s{S_T0}, 1
    s_lshl_b32 s{S_T2}, s{S_T2}, 3
    s_and_b32 s{S_T3}, s{S_T1}, 7
    s_add_u32 s{S_ROWBLK}, s{S_T2}, s{S_T3}
    s_and_b32 s{S_T0}, s{S_T0}, 1
    s_lshl_b32 s{S_T0}, s{S_T0}, 2
    s_lshr_b32 s{S_T1}, s{S_T1}, 3
    s_add_u32 s{S_COLBLK}, s{S_T0}, s{S_T1}
    s_lshr_b32 s{S_HB}, s{S_OBASE}, 15
    """)

def lane_common(a):
    L = V_L
    a(f"""
    v_and_b32 v32, 15, v{L}
    v_lshrrev_b32 v33, 4, v{L}
    v_and_b32 v34, 31, v{L}
    v_lshrrev_b32 v35, 5, v{L}
    """)

def setup_dma_kv(a, vkd, vvd):
    a(f"""
    v_lshlrev_b32 v36, 8, v33
    v_add_u32 v36, s{S_WOFF}, v36
    """)
    for jj in range(4):
        a(f"""
        v_add_u32 v37, {4*jj}, v33
        v_xor_b32 v37, v32, v37
        v_lshl_add_u32 v{vkd+jj}, v37, 4, v36
        """)
    a(f"""
    v_lshlrev_b32 v37, 2, v33
    v_xor_b32 v37, v32, v37
    v_lshl_add_u32 v{vvd}, v37, 4, v36
    """)

def setup_xw(a, V_XD, V_WD):
    L = V_L
    a(f"""
    v_lshlrev_b32 v37, 2, v33
    v_xor_b32 v37, v32, v37
    s_lshl_b32 s{S_T0}, s{S_W}, 4
    v_add_u32 v38, s{S_T0}, v33
    v_lshlrev_b32 v38, 13, v38
    v_lshl_add_u32 v{V_WD}, v37, 4, v38
    v_lshrrev_b32 v38, 3, v{L}
    s_lshl_b32 s{S_T0}, s{S_W}, 5
    v_add_u32 v38, s{S_T0}, v38
    v_mul_u32_u24 v38, 1280, v38
    v_and_b32 v39, 7, v{L}
    v_xor_b32 v37, v39, v33
    v_lshl_add_u32 v{V_XD}, v37, 4, v38
    v_xor_b32 v37, 4, v37
    v_lshl_add_u32 v{V_XD+1}, v37, 4, v38
    """)

def setup_g0_rest(a):
    setup_dma_kv(a, V_KD, V_VD)
    a(f"""
    v_xor_b32 v37, v35, v32
    v_lshlrev_b32 v37, 4, v37
    v_lshl_add_u32 v{V_KR}, v34, 8, v37
    v_lshrrev_b32 v36, 2, v32          ; r4
    v_and_b32 v37, 3, v32              ; c4
    v_and_b32 v38, 1, v33              ; mblk
    v_lshlrev_b32 v38, 5, v38
    v_lshl_add_u32 v39, v37, 3, v38
    v_lshl_add_u32 v30, v35, 2, v36    ; 4hh + r4
    v_lshl_add_u32 v39, v30, 8, v39
    v_and_b32 v31, 1, v37
    v_lshlrev_b32 v31, 1, v31
    v_lshrrev_b32 v37, 1, v37
    v_or_b32 v37, v37, v31
    v_lshl_add_u32 v38, v37, 3, v38
    v_lshl_add_u32 v30, v35, 3, v36    ; 8hh + r4
    v_lshl_add_u32 v38, v30, 8, v38
    """)
    for db in range(4):
        a(f"""
        v_xor_b32 v37, {db}, v36
        v_lshl_add_u32 v{V_VR+db}, v37, 6, v39
        v_lshl_add_u32 v{V_WR+db}, v37, 6, v38
        """)
    a(f"""
    v_lshrrev_b32 v36, 1, v34
    v_and_b32 v36, 7, v36
    v_xor_b32 v36, v35, v36
    v_lshlrev_b32 v36, 4, v36
    v_lshl_add_u32 v36, v34, 7, v36
    v_add_u32 v{V_XR}, s{S_WOFF}, v36
    v_lshrrev_b32 v36, 4, v34
    v_lshlrev_b32 v36, 10, v36
    v_lshl_add_u32 v36, v35, 8, v36
    v_lshl_add_u32 v36, v32, 4, v36
    s_lshl_b32 s{S_T0}, s{S_W}, 11
    v_add_u32 v{V_OD}, s{S_T0}, v36
    s_lshl_b32 s{S_T0}, s{S_W}, 13
    s_add_u32 s{S_T0}, s{S_T0}, {8*SLOT}
    v_lshlrev_b32 v36, 4, v{V_L}
    v_add_u32 v{V_QS}, s{S_T0}, v36
    """)

def kv_issue_list(isK, s_tile, ldspos_s, st):
    L = [f"s_lshr_b32 s{st}, s{s_tile}, 4",
         f"s_lshl_b32 s{st}, s{st}, 22",
         f"s_and_b32 s{st+1}, s{s_tile}, 15",
         f"s_lshl_b32 s{st+1}, s{st+1}, 14",
         f"s_add_u32 s{st}, s{st}, s{st+1}",
         f"s_add_u32 m0, s{ldspos_s}, s{S_WOFF}",
         f"s_add_u32 s{st}, s{st}, s{S_KVBASE}"]
    for jj in range(4):
        v = V_KD + jj if isK else V_VD
        L.append(f"buffer_load_dwordx4 v{v}, {srd(SRD_K if isK else SRD_V)}, s{st} offen offset:{jj*1024}{nt} lds")
    return L

BUF = [(7, 8, 9), (1, 3, 4), (2, 5, 6)]
def kpos(t): return (t % 3) * SLOT
def vpos(t): return (3 + t % 4) * SLOT
def issue_chunk2(a, j, V_XD, V_WD, vm=None):
    X, WA, WB = BUF[j % 3]
    T0, T1 = S_T0, S_T1
    if vm is not None: vm += [("C", j)] * 12
    a(f"s_add_u32 s{T0}, s{S_XBASE}, {j*128}")
    a(f"s_add_u32 m0, s{S_WOFF}, {X*SLOT}")
    for jj in range(4):
        if jj: a(f"s_add_u32 s{T0}, s{T0}, {8*1280-1024}")
        else: a("s_nop 0")
        a(f"buffer_load_dwordx4 v{V_XD + (jj&1)}, {srd(SRD_X)}, s{T0} offen offset:{jj*1024} lds")
    for (W, extra) in ((WA, 0), (WB, 4096)):
        a(f"s_add_u32 s{T1}, s{S_WQCOL}, {j*64*8192 + extra}")
        a(f"s_add_u32 m0, s{S_WOFF}, {W*SLOT}")
        for jj in range(4):
            if jj: a(f"s_add_u32 s{T1}, s{T1}, {4*8192-1024}")
            else: a("s_nop 0")
            a(f"buffer_load_dwordx4 v{V_WD}, {srd(SRD_WQ)}, s{T1} offen offset:{jj*1024} lds")

ACC_A, ACC_B = 72, 136
XFR = 200
WFR = 216
def compute_chunk2(a, j):
    X, WA, WB = BUF[j % 3]
    A = V_AK
    a(f"v_add_u32 v{A}, {X*SLOT}, v{V_XR}")
    for db in range(4):
        a(f"v_add_u32 v{A+4+db}, {WA*SLOT}, v{V_WR+db}")
    for ks in range(1, 4):
        a(f"v_xor_b32 v{A+ks}, {ks*32}, v{A}")
    for ks in range(4):
        a(f"ds_read_b128 {vr(XFR+4*ks,4)}, v{A+ks}")
    seq = [(ks, u, db) for ks in range(4) for u in range(2) for db in range(4)]
    def rd(f):
        ks, u, db = seq[f]
        reg = WFR + 4*(f & 7)
        for r in range(2):
            a(f"ds_read_b64_tr_b16 {vr(reg+2*r,2)}, v{A+4+db} offset:{u*SLOT + ks*4096 + r*1024}")
    PD = OPT["pd"]
    for f in range(PD): rd(f)
    for f in range(32):
        if f + PD < 32: rd(f + PD)
        rem = min(31, f + PD) - f
        a(f"s_waitcnt lgkmcnt({2*rem})")
        ks, u, db = seq[f]
        acc = (ACC_A if u == 0 else ACC_B) + 16*db
        a(f"v_mfma_f32_32x32x16_bf16 {vr(acc,16)}, {vr(WFR+4*(f&7),4)}, {vr(XFR+4*ks,4)}, {vr(acc,16)}")

def q_pack(a, acc, dst):
    for ks8 in range(8):
        db, s = ks8 >> 1, ks8 & 1
        for jj in range(4):
            src = acc + 16*db + 8*s + 2*jj
            a(f"v_mul_f32 v{src}, s{S_C}, v{src}")
            a(f"v_mul_f32 v{src+1}, s{S_C}, v{src+1}")
            a(f"v_cvt_pk_bf16_f32 v{dst+4*ks8+jj}, v{src}, v{src+1}")

def att_init(a):
    for i in range(0, 64, 2):
        a(f"v_mov_b64 {vr(V_O+i,2)}, 0")
    for i in range(0, 16, 2):
        a(f"v_mov_b64 {vr(V_NM+i,2)}, 0")
    a(f"v_mov_b32 v{V_LA}, 0")
    a(f"v_mov_b32 v{V_LB}, 0")
    a(f"s_mov_b32 s{S_THR0}, 0xff800000")

FG = [V_F, V_F+16, V_F+32]
EXT = V_F + 48
def kfrag_reg(i):
    if i < 4: return FG[2] + 4*i
    if i < 6: return EXT + 4*(i-4)
    if i < 10: return FG[0] + 4*(i-6)
    if i < 14: return FG[2] + 4*(i-10)
    return EXT + 4*(i-14)
def krd(i):
    kb, ks = i >> 3, i & 7
    return f"ds_read_b128 {vr(kfrag_reg(i),4)}, v{V_AK+ks} offset:{kb*8192}"
def k_addr_list(spos):
    A = V_AK
    return [f"v_add_u32 v{A}, s{spos}, v{V_KR}"] + [f"v_xor_b32 v{A+ks}, {ks*32}, v{A}" for ks in range(1, 8)]
def max16(S):
    T0, T1 = V_T0, V_T1
    L = [f"v_max3_f32 v{T0}, v{S+0}, v{S+1}, v{S+2}",
         f"v_max3_f32 v{T1}, v{S+3}, v{S+4}, v{S+5}"]
    for i in range(6, 14, 4):
        L.append(f"v_max3_f32 v{T0}, v{T0}, v{S+i}, v{S+i+1}")
        L.append(f"v_max3_f32 v{T1}, v{T1}, v{S+i+2}, v{S+i+3}")
    L.append(f"v_max3_f32 v{T1}, v{T1}, v{S+14}, v{S+15}")
    L.append(f"v_max_f32 v{T0}, v{T0}, v{T1}")
    return L
def expblk(k):
    S = V_S; lo = 8*k
    E = [f"v_exp_f32 v{S+i}, v{S+i}" for i in range(lo, lo+8)]
    R = []
    for i in range(lo, lo+8, 2):
        R.append([f"v_add_f32 v{V_LA}, v{V_LA}, v{S+i}", f"v_add_f32 v{V_LB}, v{V_LB}, v{S+i+1}", f"v_cvt_pk_bf16_f32 v{V_P+i//2}, v{S+i}, v{S+i+1}"])
    return E[0:4] + R[0] + E[4:6] + R[1] + E[6:8] + R[2] + R[3]
def qkm(i):
    kb, ks = i >> 3, i & 7
    c = vr(V_NM,16) if ks == 0 else vr(V_S+16*kb,16)
    return f"v_mfma_f32_32x32x16_bf16 {vr(V_S+16*kb,16)}, {vr(kfrag_reg(i),4)}, {vr(V_Q+4*ks,4)}, {c}"
def pvm(ks4, db):
    return f"v_mfma_f32_32x32x16_bf16 {vr(V_O+16*db,16)}, {vr(FG[ks4&1]+4*db,4)}, {vr(V_P+4*ks4,4)}, {vr(V_O+16*db,16)}"
def vrd(ks4, db, r):
    return f"ds_read_b64_tr_b16 {vr(FG[ks4&1]+4*db+2*r,2)}, v{V_AV+db} offset:{ks4*4096 + r*2048}"
def vrd8(ks4): return [vrd(ks4, db, r) for db in range(4) for r in range(2)]


from sched import F, schedule, LdsTracker
S_KG, S_VG, S_VPREV = 47, 58, 59

def av_addr_list(spos):
    return [f"v_add_u32 v{V_AV+db}, s{spos}, v{V_VR+db}" for db in range(4)]

def mf_list(qk=True):
    L = []
    for db in range(4): L.append((pvm(0, db), [("V0", db)]))
    for db in range(4): L.append((pvm(1, db), [("V1", db)]))
    for db in range(4): L.append((pvm(2, db), [("V2", db)]))
    if qk:
        for i in range(8): L.append((qkm(i), [("K", i)]))
    for db in range(4): L.append((pvm(3, db), [("V3", db)]))
    if qk:
        for i in range(8, 16): L.append((qkm(i), [("K", i)]))
    return L

def vstream(ks4, after, before):
    return [F(vrd(ks4, db, r), after, before, lds=(f"V{ks4}", db)) for db in range(4) for r in range(2)]

def emit_sched(a, mfs, out, lds, skip=(), lo=-1, hi=None, mf_on=True):
    hi = len(mfs) - 1 if hi is None else hi
    for g in range(lo, hi + 1):
        if g >= 0:
            m, need = mfs[g]
            w = lds.need(set(need))
            if w and not OPT["xW"]: a(w)
            if not OPT["xM"]: a(m)
        for f in out[g]:
            if f.grp in skip: continue
            if OPT["xV"] and f.ins.startswith("ds_read_b64_tr"): continue
            if OPT["xK"] and f.ins.startswith("ds_read_b128"): continue
            if OPT["xE"] and (f.ins.startswith("v_exp") or f.ins.startswith("v_add_f32") or f.ins.startswith("v_cvt")): continue
            a(f.ins)
            if f.lds: lds.issue(f.lds)

def tick_body(a, tag, dma):
    mfs = mf_list(True)
    st = []
    mx1 = [F(x, 0, 1) for x in max16(V_S+16)] + [F(f"v_cmp_lt_f32 vcc, s{S_THR}, v{V_T0}", 0, 2), F("s_nop 0", 0, 2), F(f"s_cbranch_vccnz L_slow1_{tag}", 0, 2), F(f"L_fast1_{tag}:", 0, 2, cost=0)]
    e2 = [F(x, 0, 6, grp="e") for x in expblk(2)]
    e3 = [F(x, 1, 17, grp="e") for x in expblk(3)]
    st.append(mx1 + e2 + e3)
    kst = [F(krd(i), -1, 4 + i, lds=("K", i)) for i in range(6)]
    kst += [F(krd(6), 11, 13, lds=("K", 6)), F(krd(7), 11, 14, lds=("K", 7)), F(krd(8), 11, 15, lds=("K", 8)), F(krd(9), 11, 15, lds=("K", 9))]
    kst += [F(krd(10 + k), 12 + k, 16 + k//2, lds=("K", 10 + k)) for k in range(4)]
    kst += [F(krd(14), 16, 18, lds=("K", 14)), F(krd(15), 17, 18, lds=("K", 15))]
    kst += [F(f"s_add_u32 s{S_T3}, s{S_KN}, {SLOT}\ns_cmp_ge_u32 s{S_T3}, {3*SLOT}\ns_cselect_b32 s{S_T3}, 0, s{S_T3}", 17, 19, cost=12)]
    kst += [F(x, 19, 21) for x in k_addr_list(S_T3)]
    vst = [F(vrd(2, db, r), 3, 3 + db, lds=("V2", db)) for db in range(4) for r in range(2)]
    vst += [F(vrd(3, db, r), 7, 9 + 2*db, lds=("V3", db)) for db in range(4) for r in range(2)]
    vst += [F(f"s_add_u32 s{S_T2}, s{S_VPOS}, {SLOT}\ns_cmp_ge_u32 s{S_T2}, {7*SLOT}\ns_cselect_b32 s{S_T2}, {3*SLOT}, s{S_T2}", 10, 19, cost=12)]
    vst += [F(x, 19, 21) for x in av_addr_list(S_T2)]
    vst += [F(vrd(1, db, r), 23, 29, lds=("V1n", db)) for db in range(4) for r in range(2)]
    vst += [F(vrd(0, db, r), 25, 31, lds=("V0n", db)) for db in range(4) for r in range(2)]
    st.append(vst)
    st.append(kst)
    dm = []
    if dma:
        dm += [F(f"s_add_u32 m0, s{S_KPOS}, s{S_WOFF}", 8, 16), F("s_nop 0", 8, 16)]
        dm += [F(f"buffer_load_dwordx4 v{V_KD+jj}, {srd(SRD_K)}, s{S_KG} offen offset:{jj*1024}{nt} lds", 8, 17, cost=8) for jj in range(4)]
        dm += [F(f"s_add_u32 s{S_KG}, s{S_KG}, 16384", 8, 18)]
        dm += [F(f"s_add_u32 m0, s{S_VPREV}, s{S_WOFF}", 8, 19), F("s_nop 0", 8, 19)]
        dm += [F(f"buffer_load_dwordx4 v{V_VD}, {srd(SRD_V)}, s{S_VG} offen offset:{jj*1024}{nt} lds", 8, 20, cost=8) for jj in range(4)]
        dm += [F(f"s_add_u32 s{S_VG}, s{S_VG}, 16384", 8, 21)]
    dm += [F(f"s_mov_b32 s{S_VPREV}, s{S_VPOS}", 20, 30), F(f"s_mov_b32 s{S_KPOS}, s{S_KN}", 20, 30)]
    st.append(dm)
    mx0 = [F(x, 22, 23) for x in max16(V_S)] + [F(f"v_cmp_lt_f32 vcc, s{S_THR0}, v{V_T0}", 22, 23), F("s_nop 0", 22, 23), F(f"s_cbranch_vccnz L_slow0_{tag}", 23, 23), F(f"L_fast0_{tag}:", 23, 23, cost=0)]
    e01 = [F(x, 23, 31) for x in expblk(0) + expblk(1)]
    st.append(mx0 + e01)
    st.append([F(f"s_mov_b32 s{S_VPOS}, s{S_T2}", 30, 31), F(f"s_mov_b32 s{S_KN}, s{S_T3}", 30, 31)])
    out = schedule(32, st, cap=OPT["cap"])
    pend = [("V1", db) for db in range(4) for r in range(2)] + [("V0", db) for db in range(4) for r in range(2)]
    lds = LdsTracker(pend)
    emit_sched(a, mfs, out, lds, lo=-1, hi=7)
    a.label(f"L_j8_{tag}")
    emit_sched(a, mfs, out, lds, lo=8, hi=31)
    if OPT.get("dump"):
        for g in range(-1, 32):
            print(tag, g, sum(f.cost for f in out[g]), [f.ins.split()[0] for f in out[g]])
    return mfs, out
tick_body_j8 = tick_body

def slow1_code(a, tag, mfs, out):
    a.label(f"L_slow1_{tag}")
    gb = [g for g in range(-1, 8) for f in out[g] if f.ins.startswith("L_fast1_")][0]
    class Nul:
        def __call__(self, s=""): pass
        def label(self, n): pass
    pend = [("V1", db) for db in range(4) for r in range(2)] + [("V0", db) for db in range(4) for r in range(2)]
    lds = LdsTracker(pend)
    nul = Nul()
    for g in range(-1, gb + 1):
        if g >= 0: lds.need(set(mfs[g][1]))
        for f in out[g]:
            if f.ins.startswith("L_fast1_"): break
            if f.lds: lds.issue(f.lds)
    idx = [i for i, f in enumerate(out[gb]) if f.ins.startswith("L_fast1_")][0]
    for f in out[gb][idx+1:]:
        if f.grp == "e": continue
        a(f.ins)
        if f.lds: lds.issue(f.lds)
    emit_sched(a, mfs, out, lds, skip=("e",), lo=gb+1, hi=7)
    a("s_nop 15")
    a(f"v_mov_b32 v{V_T1}, 0")
    rescale(a, V_S+16)
    done_e = [f for g in range(-1, 8) for f in out[g] if f.grp == "e"]
    for f in done_e: a(f.ins)
    a("s_nop 1")
    a(f"s_branch L_j8_{tag}")

def tick_last(a, tag):
    mx = max16(V_S+16)
    for x in mx: a(x)
    a(f"v_cmp_lt_f32 vcc, s{S_THR}, v{V_T0}")
    a("s_waitcnt lgkmcnt(0)")
    a(f"s_cbranch_vccnz L_slowL_{tag}")
    e2, e3 = expblk(2), expblk(3)
    for db in range(4):
        a(pvm(0, db))
        for x in e2[5*db:5*db+5]: a(x)
    for x in vrd8(2): a(x)
    for db in range(4):
        a(pvm(1, db))
        for x in e3[5*db:5*db+5]: a(x)
    for x in vrd8(3): a(x)
    a.label(f"L_joinL_{tag}")
    a("s_waitcnt lgkmcnt(8)")
    for db in range(4): a(pvm(2, db))
    a("s_waitcnt lgkmcnt(0)")
    for db in range(4): a(pvm(3, db))
def slowL_code(a, tag):
    a.label(f"L_slowL_{tag}")
    for db in range(4): a(pvm(0, db))
    for x in vrd8(2): a(x)
    for db in range(4): a(pvm(1, db))
    for x in vrd8(3): a(x)
    a("s_nop 15")
    a(f"v_mov_b32 v{V_T1}, 0")
    rescale(a, V_S+16)
    for x in expblk(2) + expblk(3): a(x)
    a(f"s_branch L_joinL_{tag}")

def att_prologue(a, tag, t):
    a(f"s_mov_b32 s{S_KN}, {kpos(t)}")
    for x in k_addr_list(S_KN): a(x)
    for i in range(8): a(krd(i))
    a(f"s_mov_b32 s{S_VPOS}, {vpos(t)}")
    for x in av_addr_list(S_VPOS): a(x)
    for i in range(8):
        a(f"s_waitcnt lgkmcnt({7 - i})")
        a(qkm(i))
    for i in range(8, 16): a(krd(i))
    a("s_nop 7"); a("s_nop 3")
    for x in max16(V_S): a(x)
    a(f"v_cmp_lt_f32 vcc, s{S_THR0}, v{V_T0}")
    a("s_nop 0")
    a(f"s_cbranch_vccnz L_slow0_{tag}")
    a.label(f"L_fast0_{tag}")
    a("s_waitcnt lgkmcnt(0)")
    e = expblk(0) + expblk(1)
    v1 = vrd8(1); v0 = vrd8(0)
    for i in range(8):
        a(qkm(8 + i))
        for x in e[5*i:5*i+5]: a(x)
        a(v1[i])
        if i >= 2: pass
    for x in v0: a(x)
    a(f"s_mov_b32 s{S_KPOS}, {kpos(t)}")
    a(f"s_mov_b32 s{S_KN}, {kpos(t+1)}")
    a(f"s_mov_b32 s{S_VPREV}, {vpos(t+3)}")
    for x in k_addr_list(S_KN): a(x)

def rescale(a, Sbase):
    T0, T1 = V_T0, V_T1
    a(f"v_mov_b32 v{V_T2}, v{T0}")
    a("s_nop 1")
    a(f"v_permlane32_swap_b32 v{T0}, v{V_T2}")
    a(f"v_max_f32 v{T0}, v{T0}, v{V_T2}")
    a(f"v_max_f32 v{T0}, v{T0}, v{T1}")
    a(f"v_max_f32 v{T1}, 0, v{T0}")
    a(f"v_sub_f32 v{T1}, 0, v{T1}")
    a(f"v_exp_f32 v{T1}, v{T1}")
    for i in range(16):
        a(f"v_sub_f32 v{Sbase+i}, v{Sbase+i}, v{T0}")
    for i in range(16):
        a(f"v_sub_f32 v{V_NM+i}, v{V_NM+i}, v{T0}")
    for i in range(64):
        a(f"v_mul_f32 v{V_O+i}, v{V_O+i}, v{T1}")
    a(f"v_mul_f32 v{V_LA}, v{V_LA}, v{T1}")
    a(f"v_mul_f32 v{V_LB}, v{V_LB}, v{T1}")

def slow0(a, tag):
    a.label(f"L_slow0_{tag}")
    a("s_nop 15")
    a(f"v_mov_b32 v{V_T1}, s{S_THR0}")
    a(f"v_min_f32 v{V_T1}, 0, v{V_T1}")
    rescale(a, V_S)
    a(f"s_mov_b32 s{S_THR0}, s{S_THR}")
    a(f"s_branch L_fast0_{tag}")

def att_epilogue(a, headextra):
    T0, T1 = V_T0, V_T1
    a(f"v_add_f32 v{T0}, v{V_LA}, v{V_LB}")
    a(f"v_mov_b32 v{T1}, v{T0}")
    a("s_nop 1")
    a(f"v_permlane32_swap_b32 v{T0}, v{T1}")
    a(f"v_add_f32 v{T0}, v{T0}, v{T1}")
    a(f"v_rcp_f32 v{T0}, v{T0}")
    a("s_nop 7")
    for db in range(4):
        a(f"s_add_u32 s{S_T0}, s{S_OBASE}, {headextra + db*8192}")
        for p in range(2):
            dst = V_F + 8*db + 4*p
            o = V_O + 16*db + 4*p
            for (x, y) in ((0, 1), (2, 3), (8, 9), (10, 11)):
                a(f"v_mul_f32 v{o+x}, v{o+x}, v{T0}")
                a(f"v_mul_f32 v{o+y}, v{o+y}, v{T0}")
            for k, (x, y) in enumerate(((0, 1), (2, 3), (8, 9), (10, 11))):
                a(f"v_cvt_pk_bf16_f32 v{dst+k}, v{o+x}, v{o+y}")
            a(f"buffer_store_dwordx4 {vr(dst,4)}, v{V_OD}, {srd(SRD_WS)}, s{S_T0} offen offset:{p*512} sc1")

def store_stamps(a, lo, n, slot):
    a(f"""
    s_waitcnt lgkmcnt(0)
    v_cmp_eq_u32 vcc, 0, v{V_L}
    s_and_saveexec_b64 s[60:61], vcc
    s_mul_i32 s{S_T0}, s2, {16*8}
    s_add_u32 s{S_T0}, s{S_T0}, {0x2000000 + slot*8}
    v_mov_b32 v30, 0
    """)
    for i in range(n):
        a(f"v_mov_b32 v28, s{S_STAMP+2*(lo+i)}")
        a(f"v_mov_b32 v29, s{S_STAMP+2*(lo+i)+1}")
        a(f"buffer_store_dwordx2 v[28:29], v30, {srd(SRD_WS)}, s{S_T0} offen offset:{8*i}")
        a("s_nop 1")
    a("s_mov_b64 exec, s[60:61]")


E_ACC, E_B, E_AF = 32, 112, 160
E_WD, E_OD, E_RD, E_T = 2, 7, 8, 10
def eng_setup(a):
    a("s_nop 0")
    for jj in range(5):
        a(f"""
        v_add_u32 v{E_T}, {jj*64}, v{V_L}
        v_mul_u32_u24 v{E_T+1}, 6554, v{E_T}
        v_lshrrev_b32 v{E_T+1}, 16, v{E_T+1}
        v_mul_u32_u24 v{E_T+2}, 10, v{E_T+1}
        v_sub_u32 v{E_T+2}, v{E_T}, v{E_T+2}
        v_mul_u32_u24 v{E_T+1}, 1280, v{E_T+1}
        v_lshl_add_u32 v{E_T+1}, v{E_T+2}, 4, v{E_T+1}
        v_subrev_u32 v{E_WD+jj}, {jj*1024 if jj < 4 else 0}, v{E_T+1}
        """)
    a(f"""
    v_lshlrev_b32 v{E_OD}, 4, v{V_L}
    v_lshrrev_b32 v{E_T}, 4, v{V_L}
    v_bfe_u32 v{E_T+1}, v{V_L}, 2, 2
    v_lshl_add_u32 v{E_T}, v{E_T}, 2, v{E_T+1}
    v_mul_u32_u24 v{E_T}, 160, v{E_T}
    v_and_b32 v{E_T+1}, 3, v{V_L}
    v_lshl_add_u32 v{E_RD}, v{E_T+1}, 3, v{E_T}
    """)
    for i in range(0, 80, 2):
        a(f"v_mov_b64 v[{E_ACC+i}:{E_ACC+i+1}], 0")
def eng_start(a, q0_expr_sgpr):
    a(f"""
    s_mul_i32 s{S_WQO}, s{q0_expr_sgpr}, 40960
    s_mul_i32 s{S_T1}, s{S_COLBLK}, 160
    s_add_u32 s{S_WQO}, s{S_WQO}, s{S_T1}
    s_lshr_b32 s{S_T1}, s{S_ROWBLK}, 1
    s_lshl_b32 s{S_T1}, s{S_T1}, 7
    s_add_u32 s{S_T1}, s{S_T1}, s{q0_expr_sgpr}
    s_lshl_b32 s{S_OQ}, s{S_T1}, 13
    s_and_b32 s{S_T1}, s{S_ROWBLK}, 1
    s_lshl_b32 s{S_T1}, s{S_T1}, 12
    s_add_u32 s{S_OQ}, s{S_OQ}, s{S_T1}
    """)
SLOTS = [S_SL0, S_SL1, S_SL2]
def eng_issue_w(a, slot, vm, tag):
    a(f"s_mov_b32 m0, s{SLOTS[slot]}")
    a("s_nop 0")
    for jj in range(4):
        a(f"buffer_load_dwordx4 v{E_WD+jj}, {srd(SRD_WO)}, s{S_WQO} offen offset:{jj*1024} lds")
    a(f"s_add_u32 m0, s{SLOTS[slot]}, 4096")
    a("s_nop 0")
    a(f"buffer_load_dwordx4 v{E_WD+4}, {srd(SRD_WO)}, s{S_WQO} offen lds")
    a(f"s_add_u32 s{S_WQO}, s{S_WQO}, 40960")
    vm += [("W", tag)] * 5
def eng_issue_o(a, bset, vm, tag):
    for rb in range(4):
        r = E_B + 16*bset + 4*rb
        a(f"buffer_load_dwordx4 v[{r}:{r+3}], v{E_OD}, {srd(SRD_WS)}, s{S_OQ} offen offset:{rb*1024} sc1")
    a(f"s_add_u32 s{S_OQ}, s{S_OQ}, 8192")
    vm += [("O", tag)] * 4
def vm_wait(a, vm, tags):
    idx = max(i for i, x in enumerate(vm) if x in tags)
    a(f"s_waitcnt vmcnt({min(63, len(vm) - 1 - idx)})")
def eng_compute(a, slot, bset, vm, tag, afsel):
    vm_wait(a, vm, {("W", tag), ("O", tag)})
    AF = E_AF + 20*afsel
    a(f"v_add_u32 v{E_T}, s{SLOTS[slot]}, v{E_RD}")
    for nb in range(5):
        for r in range(2):
            a(f"ds_read_b64_tr_b16 v[{AF+4*nb+2*r}:{AF+4*nb+2*r+1}], v{E_T} offset:{r*2560 + nb*32}")
    for nb in range(5):
        a(f"s_waitcnt lgkmcnt({8-2*nb})")
        for rb in range(4):
            d = E_ACC + 4*(rb*5+nb)
            b = E_B + 16*bset + 4*rb
            a(f"v_mfma_f32_16x16x32_bf16 v[{d}:{d+3}], v[{AF+4*nb}:{AF+4*nb+3}], v[{b}:{b+3}], v[{d}:{d+3}]")
def poll(a, tag, mask_lo16_only, vm):
    need = 0xFFFF if mask_lo16_only else 0xFFFFFFFF
    a(f"s_mov_b32 s{S_SPIN}, 0")
    a.label(f"L_poll_{tag}")
    a(f"buffer_load_dword v{E_T+3}, v{E_T+4}, {srd(SRD_DBG)}, 0 offen sc1")
    a("s_waitcnt vmcnt(0)")
    a(f"v_readfirstlane_b32 s{S_T0}, v{E_T+3}")
    a("s_nop 1")
    a(f"s_and_b32 s{S_T0}, s{S_T0}, {hex(need)}")
    a(f"s_cmp_eq_u32 s{S_T0}, {hex(need)}")
    a(f"s_cbranch_scc1 L_polld_{tag}")
    a("s_sleep 8")
    a(f"s_add_u32 s{S_SPIN}, s{S_SPIN}, 1")
    a(f"s_cmp_lt_u32 s{S_SPIN}, 0x40000")
    a(f"s_cbranch_scc1 L_poll_{tag}")
    a.label(f"L_polld_{tag}")
    vm.clear()
def flag_addr(a):
    a(f"s_lshr_b32 s{S_T0}, s{S_ROWBLK}, 1")
    a(f"s_lshl_b32 s{S_T0}, s{S_T0}, 4")
    a(f"v_mov_b32 v{E_T+4}, s{S_T0}")
def signal(a, tag, hi):
    a(f"s_cmp_eq_u32 s{S_W}, 0")
    a(f"s_cbranch_scc0 L_sig_{tag}")
    a(f"s_and_b32 s{S_T0}, s{S_HB}, 31")
    if hi: a(f"s_add_u32 s{S_T0}, s{S_T0}, 16")
    a(f"s_lshl_b32 s{S_T1}, 1, s{S_T0}")
    a(f"s_lshr_b32 s{S_T0}, s{S_HB}, 5")
    a(f"s_lshl_b32 s{S_T0}, s{S_T0}, 4")
    a(f"v_mov_b32 v{E_T+5}, s{S_T1}")
    a(f"v_mov_b32 v{E_T+3}, s{S_T0}")
    a("s_mov_b64 exec, 1")
    a(f"buffer_atomic_add v{E_T+5}, v{E_T+3}, {srd(SRD_DBG)}, 0 offen")
    a("s_mov_b64 exec, -1")
    a.label(f"L_sig_{tag}")
def final_reduce(a, sfx="g1"):
    T0, T1, T2, T3 = S_T0, S_T1, S_T2, S_T3
    V_T = E_T
    a("s_nop 7")
    a("s_barrier")
    a(f"s_mul_i32 s{T0}, s{S_W8}, 20480")
    a(f"v_lshlrev_b32 v{V_T}, 4, v{V_L}")
    a(f"v_add_u32 v{V_T+1}, s{T0}, v{V_T}")
    for t in range(20):
        a(f"ds_write_b128 v{V_T+1}, v[{E_ACC+4*t}:{E_ACC+4*t+3}] offset:{t*1024}")
    a("s_waitcnt lgkmcnt(0)")
    a("s_barrier")
    a(f"""
    s_and_b32 s{T0}, s{S_W8}, 3
    s_mul_i32 s{T1}, s{T0}, 5120
    s_lshr_b32 s{T2}, s{S_W8}, 2
    s_mul_i32 s{T2}, s{T2}, 3072
    s_add_u32 s{T1}, s{T1}, s{T2}
    v_add_u32 v{V_T+1}, s{T1}, v{V_T}
    v_add_u32 v{V_T+2}, 61440, v{V_T+1}
    v_add_u32 v{V_T+3}, 122880, v{V_T+1}
    v_and_b32 v{V_T+4}, 15, v{V_L}
    s_lshl_b32 s{T2}, s{S_ROWBLK}, 6
    s_lshl_b32 s{T3}, s{T0}, 4
    s_add_u32 s{T2}, s{T2}, s{T3}
    v_add_u32 v{V_T+4}, s{T2}, v{V_T+4}
    v_mul_u32_u24 v{V_T+4}, 1280, v{V_T+4}
    v_lshrrev_b32 v{V_T+5}, 4, v{V_L}
    v_lshl_add_u32 v{V_T+4}, v{V_T+5}, 3, v{V_T+4}
    s_mul_i32 s{T2}, s{S_COLBLK}, 160
    s_lshr_b32 s{T3}, s{S_W8}, 2
    s_mul_i32 s{T3}, s{T3}, 96
    s_add_u32 s{T2}, s{T2}, s{T3}
    """)
    def red_tile(k, R):
        for w in range(8):
            base = V_T+1 + (w // 3)
            a(f"ds_read_b128 v[{R+4*w}:{R+4*w+3}], v{base} offset:{(w % 3)*20480 + k*1024}")
    def fin_tile(k, R, n):
        a(f"s_waitcnt lgkmcnt({n})")
        for w in range(1, 8):
            for i in range(4):
                a(f"v_add_f32 v{R+i}, v{R+i}, v{R+4*w+i}")
        a(f"v_cvt_pk_bf16_f32 v{R+4}, v{R}, v{R+1}")
        a(f"v_cvt_pk_bf16_f32 v{R+5}, v{R+2}, v{R+3}")
        a(f"buffer_store_dwordx2 v[{R+4}:{R+5}], v{V_T+4}, {srd(SRD_OUT)}, s{T2} offen offset:{k*32}")
    red_tile(0, 32); red_tile(1, 64)
    fin_tile(0, 32, 8); fin_tile(1, 64, 0)
    a(f"s_cmp_ge_u32 s{S_W8}, 4")
    a(f"s_cbranch_scc1 L_fin_done_{sfx}")
    red_tile(2, 96)
    fin_tile(2, 96, 0)
    a.label(f"L_fin_done_{sfx}")

def tail_engine(a, n_left, left0, n2, vm, nsl, tag, k0):
    pass

def wo_touch(a, half, vt):
    a(f"""
    s_lshr_b32 s{S_T0}, s2, 3
    s_lshl_b32 s{S_T0}, s{S_T0}, 2
    s_add_u32 s{S_T0}, s{S_T0}, s{S_W}
    s_mul_i32 s{S_T0}, s{S_T0}, {16*1280}
    s_and_b32 s{S_T1}, s2, 1
    s_mul_i32 s{S_T1}, s{S_T1}, 640
    s_add_u32 s{S_T0}, s{S_T0}, s{S_T1}
    s_add_u32 s{S_T0}, s{S_T0}, {half*2048*1280}
    v_mul_u32_u24 v{vt}, 13108, v{V_L}
    v_lshrrev_b32 v{vt}, 16, v{vt}             ; lane/5
    v_mul_u32_u24 v{vt+1}, 5, v{vt}
    v_sub_u32 v{vt+1}, v{V_L}, v{vt+1}         ; lane%5
    v_mul_u32_u24 v{vt}, 1280, v{vt}
    v_lshl_add_u32 v{vt}, v{vt+1}, 7, v{vt}
    s_mov_b32 exec_lo, -1
    s_mov_b32 exec_hi, 0x0fffffff
    buffer_load_dword v{vt+2}, v{vt}, {srd(SRD_WO)}, s{S_T0} offen
    s_add_u32 s{S_T0}, s{S_T0}, {12*1280}
    s_mov_b64 exec, 0xfffff
    buffer_load_dword v{vt+3}, v{vt}, {srd(SRD_WO)}, s{S_T0} offen
    s_mov_b64 exec, -1
    """)
def o_touch(a, part, vm, nw=8):
    a(f"""
    s_lshr_b32 s{S_T0}, s2, 6
    s_lshl_b32 s{S_T0}, s{S_T0}, 4
    s_lshl_b32 s{S_T1}, s{S_W8 if nw == 8 else S_W}, {1 if nw == 8 else 2}
    s_add_u32 s{S_T0}, s{S_T0}, s{S_T1}
    s_add_u32 s{S_T0}, s{S_T0}, {part*64}
    s_lshr_b32 s{S_T1}, s{S_ROWBLK}, 1
    s_lshl_b32 s{S_T1}, s{S_T1}, 7
    s_add_u32 s{S_T0}, s{S_T0}, s{S_T1}
    s_lshl_b32 s{S_T0}, s{S_T0}, 13
    s_and_b32 s{S_T1}, s{S_ROWBLK}, 1
    s_lshl_b32 s{S_T1}, s{S_T1}, 12
    s_add_u32 s{S_T0}, s{S_T0}, s{S_T1}
    v_lshrrev_b32 v{E_T}, 5, v{V_L}
    v_lshlrev_b32 v{E_T}, 13, v{E_T}
    v_and_b32 v{E_T+1}, 31, v{V_L}
    v_lshl_add_u32 v{E_T}, v{E_T+1}, 7, v{E_T}
    buffer_load_dword v{E_T+1}, v{E_T}, {srd(SRD_WS)}, s{S_T0} offen sc1
    """)
    vm += [("T",)]
    if nw == 4:
        a(f"s_add_u32 s{S_T0}, s{S_T0}, 16384")
        a(f"buffer_load_dword v{E_T+2}, v{E_T}, {srd(SRD_WS)}, s{S_T0} offen sc1")
        vm += [("T",)]

def fifo_items():
    items = [("V", 0), ("K", 1), ("V", 1), ("K", 2), ("V", 2)]
    for t in range(16):
        items += [("K", t+3), ("V", t+3)]
    return items
def item_lds(it):
    kind, t = it
    return kpos(t) if kind == "K" else vpos(t)
def item_glob(it):
    kind, t = it
    return (t >> 4) * 4194304 + (t & 15) * 16384

def gen_g1(a):
    F0 = OPT["F0"]
    items = fifo_items()
    lane_common(a)
    setup_xw(a, G1_XD, G1_WD)
    vm = []
    issue_chunk2(a, 0, G1_XD, G1_WD, vm)
    setup_dma_kv(a, 16, 20)
    def dma_static(isK, tile, slotidx):
        a(f"s_add_u32 m0, s{S_WOFF}, {slotidx*SLOT}")
        a(f"s_add_u32 s{S_T0}, s{S_KVBASE}, {tile*16384}")
        for jj in range(4):
            v = 16 + jj if isK else 20
            a(f"buffer_load_dwordx4 v{v}, {srd(SRD_K if isK else SRD_V)}, s{S_T0} offen offset:{jj*1024}{nt} lds")
            vm.append(("D", tile, isK))
    a(f"v_lshlrev_b32 v{V_LIN}, 4, v{V_L}")
    a(f"v_add_u32 v{V_LIN}, s{S_WOFF}, v{V_LIN}")
    dma_static(True, 0, 0)
    issue_chunk2(a, 1, G1_XD, G1_WD, vm)
    issue_chunk2(a, 2, G1_XD, G1_WD, vm)
    def load_item(n):
        if OPT["nokv"]: return
        it = items[n]
        reg = V_FIFO + 16*(n % F0)
        a(f"s_add_u32 s{S_T0}, s{S_KVBASE}, {item_glob(it)}")
        for jj in range(4):
            a(f"buffer_load_dwordx4 {vr(reg+4*jj,4)}, v{V_LIN}, {srd(SRD_K if it[0]=='K' else SRD_V)}, s{S_T0} offen offset:{jj*1024}{nt}")
            vm.append(("I", n))
    for jj in range(4):
        a(f"v_add_u32 v{V_KW+jj}, {jj*1024}, v{16+jj}")
    a(f"v_mov_b32 v{V_VW}, v20")
    pace = OPT["pace"]
    pend = list(range(F0))

    def wait_item(n):
        if OPT["nokv"]: return
        last = max(i for i, x in enumerate(vm) if x == ("I", n))
        younger = len(vm) - 1 - last
        a(f"s_waitcnt vmcnt({min(63, younger)})")
    def write_item(n):
        it = items[n]
        reg = V_FIFO + 16*(n % F0)
        wait_item(n)
        base = item_lds(it)
        if it[0] == "K":
            for jj in range(4):
                a(f"v_add_u32 v{V_WA+jj}, {base}, v{V_KW+jj}")
            for jj in range(4):
                a(f"ds_write_b128 v{V_WA+jj}, {vr(reg+4*jj,4)}")
        else:
            a(f"v_add_u32 v{V_WA}, {base}, v{V_VW}")
            for jj in range(4):
                a(f"ds_write_b128 v{V_WA}, {vr(reg+4*jj,4)} offset:{jj*1024}")
    def wt(m): return -3 if m < 3 else (-2 if m < 5 else (m-5)//2)
    nrem = len(items) - F0
    issue_tick = {}
    for n in range(F0, len(items)):
        k = n - F0
        tt = max(wt(k) + 1, OPT["t0"] + (k * (OPT["taper"] - OPT["t0"])) // max(1, nrem - 1))
        tt = min(tt, wt(n) - 1)
        assert tt >= wt(k) + 1
        issue_tick.setdefault(tt, []).append(n)
    NP = OPT["np"]
    first = OPT["first"]
    def wait_tag(tag):
        idxs = [i for i, x in enumerate(vm) if x == tag]
        younger = len(vm) - 1 - max(idxs)
        a(f"s_waitcnt vmcnt({min(63, younger)})")
    for n in pend[:first]: load_item(n)
    pend = pend[first:]
    for j in range(10):
        wait_tag(("C", j))
        a("s_barrier")
        if j >= 1 and j + 2 <= 9:
            issue_chunk2(a, j+2, G1_XD, G1_WD, vm)
        if pend and j < NP:
            k = -(-len(pend) // (NP - j))
            for n in pend[:k]: load_item(n)
            pend = pend[k:]
        if j == 8:
            assert not pend
            for n in (0, 1, 2): write_item(n)
            a("s_waitcnt lgkmcnt(0)")
        if j == 9:
            for n in issue_tick.get(-2, []): load_item(n)
            for n in (3, 4): write_item(n)
            a("s_waitcnt lgkmcnt(0)")
    a("s_barrier")
    for n in issue_tick.get(-1, []): load_item(n)
    for t in range(16):
        if OPT["xB"] and t < 15: continue
        a("s_barrier")
        if OPT["g1off"] == 1: continue
        if OPT["g1off"] == 2:
            for n in issue_tick.get(t, []): load_item(n)
            continue
        for n in issue_tick.get(t, []): load_item(n)
        write_item(5 + 2*t)
        write_item(6 + 2*t)
        a("s_waitcnt lgkmcnt(0)")
    def wait_kv(t):
        vm_wait(a, vm, {("D", t + 2, False)})
    for t in range(16, 32):
        a("s_barrier")
        if t == 16:
            eng_setup(a)
            a(f"s_lshl_b32 s{S_T2}, s{S_W}, 4")
            eng_start(a, S_T2)
            a(f"s_mul_i32 s{S_SL0}, s{S_W}, 12288")
            a(f"s_add_u32 s{S_SL0}, s{S_SL0}, {7*SLOT}")
            a(f"s_add_u32 s{S_SL1}, s{S_SL0}, 5120")
            a(f"s_lshl_b32 s{S_SL2}, s{S_W}, 13")
            a(f"s_add_u32 s{S_SL2}, s{S_SL2}, {5*SLOT}")
            flag_addr(a)
        if t == 17:
            signal(a, "a", False)
            vm.append(("S",)) if False else None
        if t == OPT['pt0'] - 1 and OPT['op1']:
            a(f"buffer_load_dword v{E_T+3}, v{E_T+4}, {srd(SRD_DBG)}, 0 offen sc1")
            vm.append(("P",))
        if t == OPT['pt0'] and OPT['op1']:
            vm_wait(a, vm, {("P",)})
            a(f"v_readfirstlane_b32 s{S_T0}, v{E_T+3}")
            a("s_nop 1")
            a(f"s_and_b32 s{S_T0}, s{S_T0}, 0xffff")
            a(f"s_cmp_eq_u32 s{S_T0}, 0xffff")
            a("s_cbranch_scc1 L_polld_p1")
            keep = list(vm)
            poll(a, "p1", True, vm)
            vm[:] = keep
            if OPT["ot"]: o_touch(a, 0, vm, 4)
        if t == OPT["ott"] and not OPT["op1"] and OPT["ot"]:
            keep = list(vm)
            poll(a, "p1e", True, vm)
            vm[:] = keep
            o_touch(a, 0, vm, 4)
        if t <= 28:
            for isK in (True, False):
                tile = t + 3
                pos = kpos(tile) if isK else vpos(tile)
                a(f"s_add_u32 m0, s{S_WOFF}, {pos}")
                a(f"s_add_u32 s{S_T0}, s{S_KVBASE}, {item_glob(('K', tile))}")
                for jj in range(4):
                    v = G1_KD + jj if isK else G1_VD
                    a(f"buffer_load_dwordx4 v{v}, {srd(SRD_K if isK else SRD_V)}, s{S_T0} offen offset:{jj*1024}{nt} lds")
                    vm.append(("D", tile, isK))
        if OPT["op1"]:
            c = t - OPT['pt0'] - 2
            if c >= 0: eng_compute(a, c % 2, c % 3, vm, c, c % 2)
            c = t - OPT['pt0']
            if c >= 0:
                eng_issue_w(a, c % 2, vm, c); eng_issue_o(a, c % 3, vm, c)
        if 17 <= t <= 29:
            wait_kv(t)
    a("s_barrier")
    signal(a, "b", True)
    if not OPT["op1"]:
        common_tail(a, "g1")
        return
    if not OPT["op1"]:
        poll(a, "p1", True, vm)
        if OPT["ot"]: o_touch(a, 0, vm)
        seq = list(range(16)); issued = 0; slot_of = {}
        free = [0, 1, 2]
        done = 0
    else:
        done = 32 - OPT['pt0'] - 2; issued = done + 2
        slot_of = {done: done % 2, done + 1: (done + 1) % 2}; free = [2]
    def iss(c, w=True, o=True):
        if w:
            sl = free.pop(0); slot_of[c] = sl
            eng_issue_w(a, sl, vm, c)
        if o: eng_issue_o(a, c % 3, vm, c)
    def comp(c):
        eng_compute(a, slot_of[c], c % 3, vm, c, c % 2)
        free.append(slot_of[c])
    while issued < 16 and free: iss(issued); issued += 1
    p2 = 5
    wnext = 16
    started = False
    for c in range(done, 16):
        comp(c)
        if issued < 16:
            iss(issued); issued += 1
        elif wnext < 16 + min(3, p2):
            if not started:
                a(f"s_mul_i32 s{S_T2}, s{S_W}, {p2}")
                a(f"s_add_u32 s{S_T2}, s{S_T2}, 108")
                a(f"s_mov_b32 s{S_HB}, s{S_T2}")
                a(f"s_mul_i32 s{S_WQO}, s{S_T2}, 40960")
                a(f"s_mul_i32 s{S_T1}, s{S_COLBLK}, 160")
                a(f"s_add_u32 s{S_WQO}, s{S_WQO}, s{S_T1}")
                started = True
            iss(wnext, True, False); wnext += 1
    while wnext < 16 + min(3, p2) and free:
        iss(wnext, True, False); wnext += 1
    poll(a, "p2", False, vm)
    if OPT["ot"]: o_touch(a, 1, vm, 4)
    a(f"""
    s_lshr_b32 s{S_T1}, s{S_ROWBLK}, 1
    s_lshl_b32 s{S_T1}, s{S_T1}, 7
    s_add_u32 s{S_T1}, s{S_T1}, s{S_HB}
    s_lshl_b32 s{S_OQ}, s{S_T1}, 13
    s_and_b32 s{S_T1}, s{S_ROWBLK}, 1
    s_lshl_b32 s{S_T1}, s{S_T1}, 12
    s_add_u32 s{S_OQ}, s{S_OQ}, s{S_T1}
    """)
    for c in range(16, wnext):
        eng_issue_o(a, c % 3, vm, c)
    nxt = wnext
    for c in range(16, 16 + p2):
        comp(c)
        if nxt < 16 + p2:
            iss(nxt); nxt += 1
    final_reduce(a)
    return


def common_tail(a, sfx):
    vm = []
    a(f"s_lshl_b32 s{S_T2}, s{S_W8}, 3")
    eng_start(a, S_T2)
    for c in range(3): eng_issue_w(a, c, vm, c)
    poll(a, "p1" + sfx, True, vm)
    for c in range(3): eng_issue_o(a, c, vm, c)
    for c in range(8):
        eng_compute(a, c % 3, c % 3, vm, c, c % 2)
        n = c + 3
        if n < 8:
            eng_issue_w(a, n % 3, vm, n); eng_issue_o(a, n % 3, vm, n)
        else:
            if n == 8:
                a(f"s_add_u32 s{S_WQO}, s{S_WQO}, {56*40960}")
                a(f"s_add_u32 s{S_OQ}, s{S_OQ}, {56*8192}")
            eng_issue_w(a, n % 3, vm, n)
    if OPT["tp"] and sfx == "g0": stamp(a, 1)
    poll(a, "p2" + sfx, False, vm)
    if OPT["tp"] and sfx == "g0": stamp(a, 2)
    if OPT["ot"]: o_touch(a, 1, vm, 8)
    for c in range(8, 11): eng_issue_o(a, c % 3, vm, c)
    for c in range(8, 16):
        eng_compute(a, c % 3, c % 3, vm, c, c % 2)
        n = c + 3
        if n < 16:
            eng_issue_w(a, n % 3, vm, n); eng_issue_o(a, n % 3, vm, n)
    final_reduce(a, sfx)
def final_reduce2(a): final_reduce(a, "g0")
def g0_tail(a):
    vm = []
    a("s_waitcnt vmcnt(0)")
    a("s_barrier")
    stamp(a, 4)
    eng_setup(a)
    a(f"s_mul_i32 s{S_T2}, s{S_W}, 11")
    a(f"s_add_u32 s{S_T2}, s{S_T2}, 64")
    eng_start(a, S_T2)
    a(f"s_mul_i32 s{S_SL0}, s{S_W}, 20480")
    a(f"s_add_u32 s{S_SL1}, s{S_SL0}, 5120")
    a(f"s_add_u32 s{S_SL2}, s{S_SL0}, 10240")
    flag_addr(a)
    if not OPT["op1"]:
        common_tail(a, "g0")
        return
    n = 11
    for c in range(3): eng_issue_w(a, c, vm, c)
    poll(a, "g0", False, vm)
    if OPT["tp"]: stamp(a, 1)
    for c in range(3):
        eng_issue_o(a, c % 3, vm, c)
    for c in range(n):
        eng_compute(a, c % 3, c % 3, vm, c, c % 2)
        if c + 3 < n:
            eng_issue_w(a, c % 3, vm, c + 3); eng_issue_o(a, c % 3, vm, c + 3)
    if OPT["tp"]: stamp(a, 2)
    final_reduce2(a)

def gen_k1():
    a = Asm()
    setup_scalar(a)
    a(f"s_cmp_eq_u32 s{S_G}, 0")
    a("s_cbranch_scc0 L_g1")
    a("s_setprio 1")
    if OPT["touch"]:
        a(f"""
        s_lshr_b32 s{S_T0}, s2, 3
        s_lshl_b32 s{S_T0}, s{S_T0}, 2
        s_add_u32 s{S_T0}, s{S_T0}, s{S_W}          ; worker 0..127
        s_and_b32 s{S_T1}, s2, 1
        s_mul_i32 s{S_T1}, s{S_T1}, {8*128*1280}
        s_mul_i32 s{S_T2}, s{S_T0}, {80*128}
        s_add_u32 s{S_T1}, s{S_T1}, s{S_T2}
        v_lshlrev_b32 v40, 7, v{V_L}
        buffer_load_dword v41, v40, {srd(SRD_X)}, s{S_T1} offen
        s_mul_i32 s{S_T2}, s{S_T0}, 5
        v_lshrrev_b32 v42, 4, v{V_L}
        v_add_u32 v42, s{S_T2}, v42
        v_lshlrev_b32 v42, 13, v42
        v_and_b32 v43, 7, v{V_L}
        v_lshlrev_b32 v43, 7, v43
        v_add_u32 v42, v42, v43
        v_bfe_u32 v43, v{V_L}, 3, 1
        v_lshl_add_u32 v42, v43, 12, v42
        s_and_b32 s{S_T3}, s2, 7
        s_lshr_b32 s{S_T3}, s{S_T3}, 1
        s_lshl_b32 s{S_T3}, s{S_T3}, 10             ; hg*1024
        buffer_load_dword v44, v42, {srd(SRD_WQ)}, s{S_T3} offen
        s_add_u32 s{S_T1}, s{S_T1}, 8192
        s_add_u32 s{S_T3}, s{S_T3}, {4*8192}
        s_mov_b64 exec, 0xffff
        buffer_load_dword v45, v40, {srd(SRD_X)}, s{S_T1} offen
        buffer_load_dword v46, v42, {srd(SRD_WQ)}, s{S_T3} offen
        s_mov_b64 exec, -1
        """)
    lane_common(a)
    setup_g0_rest(a)
    for i in range(0, 128, 2):
        a(f"v_mov_b64 {vr(ACC_A+i,2)}, 0")
    for j in range(10):
        if OPT["prof"] == 5 and j in (5, 6): a(f"s_memtime s[{84+6*(j-5)}:{85+6*(j-5)}]")
        a("s_barrier")
        if OPT["prof"] == 5 and j in (5, 6): a(f"s_memtime s[{86+6*(j-5)}:{87+6*(j-5)}]")
        if OPT["prof"] == 7 and j in (0,1,2,3,4,6,8,9): a(f"s_memrealtime s[{84+2*[0,1,2,3,4,6,8,9].index(j)}:{85+2*[0,1,2,3,4,6,8,9].index(j)}]")
        if not OPT["nocomp"]: compute_chunk2(a, j)
        if OPT["prof"] == 5 and j in (5, 6): a(f"s_memtime s[{88+6*(j-5)}:{89+6*(j-5)}]")
        if OPT["prof"] == 4: a(f"s_memtime s[{84+2*(j%8)}:{85+2*(j%8)}]") if j < 8 else None
    a("s_waitcnt vmcnt(0)")
    a("s_nop 15")
    q_pack(a, ACC_A, V_Q)
    q_pack(a, ACC_B, 200)
    if not OPT["tp"]: stamp(a, 1)
    a("s_barrier")
    for k in range(8):
        a(f"ds_write_b128 v{V_QS}, {vr(200+4*k,4)} offset:{k*1024}")
    att_init(a)
    a(f"s_mov_b32 s{S_THR}, {hex(f2u(float(OPT['thr'])))}")
    a("s_waitcnt lgkmcnt(0)")
    att_prologue(a, "pa", 0)
    slowgen = []
    def loop(tag, n, dK, dV, wait):
        if n > 1:
            a(f"s_mov_b32 s{S_T}, 0")
            a.label(f"L_att_{tag}")
        if not (OPT["xB"] and tag == "r1"): a("s_barrier")
        mfs, out = tick_body_j8(a, tag, dK)
        if wait is not None: a(f"s_waitcnt vmcnt({wait})")
        if n > 1:
            a(f"s_add_u32 s{S_T}, s{S_T}, 1")
            a(f"s_cmp_lt_u32 s{S_T}, {n}")
            a(f"s_cbranch_scc1 L_att_{tag}")
        slowgen.append((tag, mfs, out))
    if OPT["prof"] == 3: a("s_memtime s[84:85]")
    loop("r1", 15, False, False, None)
    if OPT["prof"] == 3: a("s_memtime s[86:87]")
    a("s_barrier")
    tick_last(a, "r1")
    if not OPT["tp"]: stamp(a, 2)
    att_epilogue(a, 0)
    if OPT["wt"] == 1:
        wo_touch(a, 0, 2)
        if OPT["wt"] == 1:
            a("s_waitcnt vmcnt(0)") if False else None
    for k in range(8):
        a(f"ds_read_b128 {vr(V_Q+4*k,4)}, v{V_QS} offset:{k*1024}")
    att_init(a)
    a("s_waitcnt lgkmcnt(0)")
    att_prologue(a, "pb", 16)
    if OPT["prof"] == 2: a("s_memtime s[84:85]")
    loop("r2", 15, False, False, 0)
    if OPT["wt"] == 2: wo_touch(a, 0, 2); wo_touch(a, 1, 15)
    elif OPT["wt"]: wo_touch(a, 1, 2)
    a("s_barrier")
    tick_last(a, "r2")
    stamp(a, 3)
    if OPT["prof"] == 2: a("s_memtime s[86:87]")
    att_epilogue(a, 16*32768)
    g0_tail(a)
    if OPT["stamps"]:
        a("s_waitcnt vmcnt(0)")
        stamp(a, 5)
        a(f"s_cmp_eq_u32 s{S_W}, 0")
        a("s_cbranch_scc0 L_end")
        store_stamps(a, 0, 6, 0)
    a("s_branch L_end")
    for tag in ("pa", "r1", "pb", "r2"):
        slow0(a, tag)
    for (tag, mfs, out) in slowgen:
        slow1_code(a, tag, mfs, out)
    for tag in ("r1", "r2"):
        slowL_code(a, tag)
    a.label("L_g1")
    gen_g1(a)
    a.label("L_end")
    a("s_endpgm")
    return a.text()

K1 = "standalone__mha_block_cached__near_ridge_kernel"
hdr = "; generated by gen5.py\n; @launch grid=(256,1,1) block=(512,1,1) lds=163840\n"
txt = hdr + HEADER_COMMON + kernel_begin(K1) + gen_k1() + '.section .rodata,"a"\n.p2align 6\n' + kernel_desc(K1, 256, 102, 256)
open(OUT, "w").write(txt)
```
